```python
import torch

def _softmax(x, axis=-1):
    return torch.softmax(x, dim=axis)
def _gelu(x):
    return torch.nn.functional.gelu(x, approximate="tanh")
def _silu(x):
    return torch.nn.functional.silu(x)
def _sigmoid(x):
    return torch.sigmoid(x)
def _layernorm(x, axis=-1, eps=1e-5):
    m = x.mean(dim=axis, keepdim=True)
    v = x.var(dim=axis, keepdim=True, unbiased=False)
    return (x - m) / torch.sqrt(v + eps)
def _scatter_add(tgt, idx, src, axis=0):
    return tgt.clone().index_add_(axis, idx, src)
def _segment_sum(src, seg, n):
    out = torch.zeros((n,) + src.shape[1:], dtype=src.dtype)
    return out.index_add_(0, seg, src)
def _pad(x, pw):
    flat = tuple(v for pair in reversed(pw) for v in pair)
    return torch.nn.functional.pad(x, flat)

kernel_name = 'sequential_preLN__spectral_fnet__swiglu_ffn__prompt'

def setup_inputs():

    _w = (lambda a: (lambda t: t.to(torch.bfloat16) if t.is_floating_point() else t)(torch.as_tensor(a)))
    def _A_setup():
        B, S, D = 1, 2048, 512
        ns = torch.arange(S)[:, None] * torch.arange(S)[None, :]
        nd = torch.arange(D)[:, None] * torch.arange(D)[None, :]
        Ws_re = torch.cos(-2.0 * torch.pi * ns / S).to(float)
        Ws_im = torch.sin(-2.0 * torch.pi * ns / S).to(float)
        Wd_re = torch.cos(-2.0 * torch.pi * nd / D).to(float)
        Wd_im = torch.sin(-2.0 * torch.pi * nd / D).to(float)
        return {
            "x": _w((lambda *s: torch.randn(*s, dtype=torch.bfloat16) * 0.05)(B, S, D)),
            "dft_seq_re": _w(Ws_re),
            "dft_seq_im": _w(Ws_im),
            "dft_hid_re": _w(Wd_re),
            "dft_hid_im": _w(Wd_im),
        }
    _A_in = _A_setup()

    def _B_setup():
        B, S, D, F = 1, 2048, 512, 1792
        return {
            "x": _w((lambda *s: torch.randn(*s, dtype=torch.bfloat16) * 0.05)(B, S, D)),
            "w_gate": _w((lambda *s: torch.randn(*s, dtype=torch.bfloat16) * 0.2)(D, F)),
            "w_up": _w((lambda *s: torch.randn(*s, dtype=torch.bfloat16) * 0.2)(D, F)),
            "w_down": _w((lambda *s: torch.randn(*s, dtype=torch.bfloat16) * 0.2)(F, D)),
        }
    _B_in = _B_setup()

    return {
        "A_x": _A_in["x"],
        "A_dft_seq_re": _A_in["dft_seq_re"],
        "A_dft_seq_im": _A_in["dft_seq_im"],
        "A_dft_hid_re": _A_in["dft_hid_re"],
        "A_dft_hid_im": _A_in["dft_hid_im"],
        "B_x": _B_in["x"],
        "B_w_gate": _B_in["w_gate"],
        "B_w_up": _B_in["w_up"],
        "B_w_down": _B_in["w_down"],
    }

def reference(A_x, A_dft_seq_re, A_dft_seq_im, A_dft_hid_re, A_dft_hid_im, B_x, B_w_gate, B_w_up, B_w_down):
    def _A_ref(x, dft_seq_re, dft_seq_im, dft_hid_re, dft_hid_im):
        a = torch.einsum("bsd,ed->bse", x, dft_hid_re)
        b = torch.einsum("bsd,ed->bse", x, dft_hid_im)
        y = torch.einsum("ts,bse->bte", dft_seq_re, a) - torch.einsum("ts,bse->bte", dft_seq_im, b)
        return y

    def _B_ref(x, w_gate, w_up, w_down):
        g = _silu(x @ w_gate)
        u = x @ w_up
        return (g * u) @ w_down

    x = A_x
    h = x + _A_ref(_layernorm(x, axis=-1), A_dft_seq_re, A_dft_seq_im, A_dft_hid_re, A_dft_hid_im)
    h2 = h + _B_ref(_layernorm(h, axis=-1), B_w_gate, B_w_up, B_w_down)
    return h2
```

```python
class Asm:
    def __init__(self):
        self.lines = []
        self.uid = 0
    def __call__(self, s=""):
        for ln in s.split("\n"):
            ln = ln.strip()
            if ln:
                self.lines.append(ln if ln.endswith(":") else "    " + ln)
    def label(self, base):
        self.uid += 1
        return f"L_{base}_{self.uid}"
    def text(self):
        return "\n".join(self.lines) + "\n"

HEAD = '.amdgcn_target "amdgcn-amd-amdhsa--gfx950"\n.text\n'

def kernel_open(name):
    return f".globl {name}\n.p2align 8\n.type {name},@function\n{name}:\n"

def descriptor(name, vgpr, sgpr=96, accum=None, kernarg=96):
    if accum is None:
        accum = min(256, (vgpr + 3) // 4 * 4)
    return (f".p2align 6\n.amdhsa_kernel {name}\n"
            f"  .amdhsa_next_free_vgpr {vgpr}\n  .amdhsa_next_free_sgpr {sgpr}\n"
            f"  .amdhsa_accum_offset {accum}\n  .amdhsa_group_segment_fixed_size 0\n"
            f"  .amdhsa_kernarg_size {kernarg}\n  .amdhsa_user_sgpr_count 2\n"
            f"  .amdhsa_user_sgpr_kernarg_segment_ptr 1\n  .amdhsa_system_sgpr_workgroup_id_x 1\n"
            f".end_amdhsa_kernel\n")
```

```python
import re

TRANS = ("v_exp_", "v_log_", "v_rcp_", "v_rsq_", "v_sqrt_", "v_sin_", "v_cos_")

def regs(tok):
    tok = tok.strip()
    tok = re.sub(r"^-|^abs\(|\)$|^neg\(", "", tok)
    m = re.fullmatch(r"([vas])(\d+)", tok)
    if m:
        return [(m.group(1), int(m.group(2)))]
    m = re.fullmatch(r"([vas])\[(\d+):(\d+)\]", tok)
    if m:
        return [(m.group(1), i) for i in range(int(m.group(2)), int(m.group(3)) + 1)]
    if tok == "vcc":
        return [("s", 106), ("s", 107)]
    if tok in ("vcc_lo",): return [("s", 106)]
    if tok in ("vcc_hi",): return [("s", 107)]
    if tok == "m0": return [("m", 0)]
    if tok == "exec": return [("e", 0), ("e", 1)]
    if tok == "exec_lo": return [("e", 0)]
    if tok == "exec_hi": return [("e", 1)]
    return []

class Ins:
    def __init__(self, line):
        self.line = line
        s = line.split(";")[0].strip()
        self.label = s.endswith(":")
        self.op = ""
        self.w = []; self.r = []; self.srcc = []; self.ab = []; self.sdata = []
        self.kind = "other"; self.states = 1; self.passes = 0
        if self.label or not s or s.startswith("."):
            self.states = 0; self.kind = "none"
            return
        parts = s.split(None, 1)
        self.op = op = parts[0]
        rest = parts[1] if len(parts) > 1 else ""
        rest = re.sub(r"(quad_perm|op_sel|op_sel_hi|neg_lo|neg_hi):\[[^\]]*\]", lambda m: m.group(0).replace(",", "_"), rest)
        ops = [o.strip() for o in rest.split(",")] if rest else []
        mods = ""
        if ops:
            last = ops[-1].split(None, 1)
            ops[-1] = last[0]
            mods = last[1] if len(last) > 1 else ""
        self.mods = mods; self.ops = ops
        R = [regs(o) for o in ops]
        flat = lambda xs: [x for l in xs for x in l]
        if op == "s_nop":
            self.states = int(ops[0], 0) + 1
        elif op.startswith("v_mfma"):
            self.kind = "mfma"
            self.passes = 8 if "32x32" in op else 4
            self.w = R[0]; self.ab = R[1] + R[2]; self.srcc = R[3]; self.r = self.ab + self.srcc
        elif op.startswith("v_"):
            self.kind = "valu"
            self.trans = op.startswith(TRANS)
            self.dot = op.startswith("v_dot")
            self.dpp = "_dpp" in op or "row_" in mods or "quad_perm" in mods
            self.perml = op.startswith("v_permlane")
            self.rdl = op.startswith(("v_readlane", "v_readfirstlane", "v_writelane"))
            if self.perml:
                self.w = R[0] + R[1]; self.r = R[0] + R[1]
            elif op.startswith(("v_add_co", "v_sub_co", "v_addc_co", "v_subb_co")):
                self.w = R[0] + R[1]; self.r = flat(R[2:])
            else:
                self.w = R[0]; self.r = flat(R[1:])
                if op.startswith(("v_fmac", "v_dot2c", "v_writelane")) or self.dpp:
                    self.r = self.r + R[0]
                if op.startswith("v_cmpx"):
                    self.w = self.w + [("e", 0), ("e", 1)]
        elif op.startswith(("buffer_", "global_")):
            self.kind = "vmem"
            lds = "lds" in mods.split() or "_lds_" in op
            self.lds = lds
            if lds:
                self.r = flat(R) + [("m", 0)]
            elif "_load" in op:
                self.w = R[0]; self.r = flat(R[1:])
            else:
                self.r = flat(R)
                di = 0 if op.startswith("buffer_") else 1
                if op.endswith(("x3", "x4")):
                    self.sdata = R[di]
                if "atomic" in op and "sc0" in mods.split():
                    self.w = R[0]
        elif op.startswith("ds_"):
            self.kind = "ds"
            if op.startswith(("ds_read", "ds_bpermute", "ds_permute", "ds_swizzle")):
                self.w = R[0]; self.r = flat(R[1:])
            else:
                self.r = flat(R)
        elif op.startswith("s_"):
            self.kind = "salu"
            if op.startswith(("s_cmp", "s_cbranch", "s_branch", "s_waitcnt", "s_barrier", "s_endpgm", "s_sleep", "s_setprio", "s_bitcmp")):
                self.r = flat(R)
            else:
                self.w = R[0] if R else []; self.r = flat(R[1:])
                if "saveexec" in op:
                    self.w = self.w + [("e", 0), ("e", 1)]

def need(p, c):
    n = 0
    pw, cr, cw = set(p.w), set(c.r), set(c.w)
    isv = lambda s: {x for x in s if x[0] in "va"}
    iss = lambda s: {x for x in s if x[0] == "s"}
    if p.kind == "mfma":
        d = pw
        t = {4: (6, 8, 3), 8: (10, 12, 7)}[p.passes]
        if c.kind == "mfma":
            if d & set(c.ab): n = max(n, t[1])
            if d & set(c.srcc) and not (p.w == c.srcc and p.passes == c.passes): n = max(n, t[0])
            if d & cw and not (p.w == c.w and p.passes == c.passes): n = max(n, t[0])
        elif c.kind in ("valu", "vmem", "ds"):
            if d & (cr | cw): n = max(n, t[1])
        if c.kind in ("valu", "vmem", "ds") and set(p.srcc) & cw: n = max(n, t[2])
    if p.kind == "valu":
        v = isv(pw)
        if c.kind == "mfma" and v & cr: n = max(n, 3 if p.dot else 2)
        if c.kind == "valu":
            if v & cr:
                if c.dpp or c.perml: n = max(n, 2)
                if c.rdl: n = max(n, 1)
                if p.trans: n = max(n, 1)
            if p.dot and v & (cr | cw):
                same = c.op == p.op and not (v & set(sum([regs(o) for o in c.ops[1:3]], [])))
                if not same: n = max(n, 3)
            if iss(pw) & cr: n = max(n, 4 if c.rdl else 2)
            if {x for x in pw if x[0] == "e"}:
                n = max(n, 5 if c.dpp else 4 if (c.perml or c.rdl) else 0)
        if p.dot and c.kind in ("vmem", "ds") and v & (cr | cw): n = max(n, 3)
        if c.kind == "vmem" and iss(pw) & cr: n = max(n, 5)
        if c.kind == "salu" and iss(pw) & cr: n = max(n, 1)
        if c.kind == "mfma" and {x for x in pw if x[0] == "e"}: n = max(n, 4)
    if p.kind == "salu" and ("m", 0) in pw and c.kind == "vmem" and c.lds: n = max(n, 1)
    if p.kind == "vmem" and set(p.sdata) & cw: n = max(n, 2)
    return n

WINDOW = 24
def fix(lines):
    out = []
    added = 0
    for ln in lines:
        c = Ins(ln)
        if c.kind != "none":
            dist = 0; pad = 0
            for p in reversed(out):
                if dist >= WINDOW: break
                if p.kind != "none":
                    pad = max(pad, need(p, c) - dist)
                    dist += p.states
            while pad > 0:
                k = min(pad, 16)
                out.append(Ins(f"    s_nop {k-1}")); pad -= k; added += k
        out.append(c)
    lab = {i.line.split(";")[0].strip()[:-1]: k for k, i in enumerate(out) if i.label}
    for k, b in enumerate(out):
        if b.op.startswith(("s_cbranch", "s_branch")) and b.ops[0] in lab:
            pre = [i for i in out[max(0, k - WINDOW):k + 1] if i.kind != "none"]
            post = [i for i in out[lab[b.ops[0]]:lab[b.ops[0]] + 2 * WINDOW] if i.kind != "none"]
            d0 = 0
            for c in post:
                dist = d0
                for p in reversed(pre):
                    if need(p, c) > dist:
                        raise SystemExit(f"hazard across branch {b.line.strip()}: {p.line.strip()} -> {c.line.strip()}")
                    dist += p.states
                d0 += c.states
                if d0 >= WINDOW: break
    return [i.line for i in out], added
```

```python
import struct, sys
from asmlib import *
import hazard

NAME = "sequential_preLN__spectral_fnet__swiglu_ffn__prompt"
U_OFF, MU_OFF, HC_OFF, G_OFF, FLAG_OFF = 0, 0x240000, 0x280000, 0x480000, 0xB80000
WS_BYTES = 0xC00000
GR = 112 * 1024

SRD = dict(X=8, WS=12, SEQRE=16, SEQIM=20, HIDRE=24, HIDIM=28, WG=32, WU=36, WD=40, OUT=44, DBG=48)
KOFF = dict(X=0, SEQRE=8, SEQIM=16, HIDRE=24, HIDIM=32, WG=48, WU=56, WD=64, OUT=72, DBG=80, WS=88)
SIZE = dict(X=2097152, SEQRE=8388608, SEQIM=8388608, HIDRE=524288, HIDIM=524288, WG=1835008, WU=1835008,
            WD=1835008, OUT=2097152, DBG=256, WS=WS_BYTES)
def srd(n):
    return f"s[{SRD[n]}:{SRD[n]+3}]"
def fl(x):
    return hex(struct.unpack("<I", struct.pack("<f", x))[0])
def vr(b, n=4, p="v"):
    return f"{p}[{b}:{b+n-1}]"

sWID, sXCD, sJ, sRB, sCB, sT0, sT1, sT2, sT3, sT4, sT5 = "s52", "s53", "s54", "s55", "s56", "s60", "s61", "s62", "s63", "s64", "s65"
vLANE = "v1"

def prologue(a, names, end):
    a(f"s_cmp_ge_u32 s2, 256\ns_cbranch_scc1 {end}")
    for n in names:
        a(f"s_load_dwordx2 s[{SRD[n]}:{SRD[n]+1}], s[0:1], {KOFF[n]}")
    a(f"v_lshrrev_b32 v2, 6, v0\nv_and_b32 {vLANE}, 63, v0\nv_readfirstlane_b32 {sWID}, v2")
    for n in names:
        a(f"s_mov_b32 s{SRD[n]+2}, {SIZE[n]}\ns_mov_b32 s{SRD[n]+3}, 0x20000")
    a(f"""
    s_and_b32 {sXCD}, s2, 7
    s_lshr_b32 {sJ}, s2, 3
    s_and_b32 {sRB}, {sXCD}, 1
    s_lshl_b32 {sRB}, {sRB}, 3
    s_and_b32 {sT0}, {sJ}, 7
    s_or_b32 {sRB}, {sRB}, {sT0}
    s_lshr_b32 {sCB}, {sXCD}, 1
    s_lshl_b32 {sCB}, {sCB}, 2
    s_lshr_b32 {sT0}, {sJ}, 3
    s_or_b32 {sCB}, {sCB}, {sT0}
    """)

def phase_a(a, SC, LX=0):
    XP = 1040
    LST = LX + 32 * XP
    LH = LST + 256
    sS2, sQ, sP = "s57", "s58", "s59"
    X, T1, COS, NSIN, SIN, MRE, MIM, ST = 64, 96, 128, 136, 144, 152, 160, 16
    DRE, DIM = 168, 200
    a(f"""
    s_lshr_b32 {sS2}, {sJ}, 2
    s_lshl_b32 {sS2}, {sS2}, 3
    s_or_b32 {sS2}, {sS2}, {sXCD}
    s_and_b32 {sQ}, {sJ}, 1
    s_bfe_u32 {sP}, {sJ}, 0x10001
    s_lshl_b32 {sT0}, {sWID}, 19
    s_lshl_b32 {sT1}, {sS2}, 10
    s_add_u32 {sT0}, {sT0}, {sT1}
    v_lshlrev_b32 v2, 4, {vLANE}
    v_and_b32 v3, 15, {vLANE}
    v_lshrrev_b32 v4, 4, {vLANE}
    v_lshlrev_b32 v5, 14, v3
    v_lshl_add_u32 v5, v4, 4, v5
    s_mov_b32 {sT1}, 0x40000
    s_waitcnt lgkmcnt(0)
    """)
    for j in range(8):
        a(f"buffer_load_dwordx4 {vr(X+4*j)}, v2, {srd('X')}, {sT0} offen")
        if j < 7:
            a(f"s_add_u32 {sT0}, {sT0}, 0x10000")
    a(f"""
    buffer_load_dwordx4 {vr(COS)}, v5, {srd('HIDRE')}, 0 offen
    buffer_load_dwordx4 {vr(COS+4)}, v5, {srd('HIDRE')}, {sT1} offen
    buffer_load_dwordx4 {vr(NSIN)}, v5, {srd('HIDIM')}, 0 offen
    buffer_load_dwordx4 {vr(NSIN+4)}, v5, {srd('HIDIM')}, {sT1} offen
    """)
    a(f"""
    s_lshl_b32 {sT0}, {sP}, 3
    v_add_u32 v6, {sT0}, v3
    v_cvt_f32_u32 v6, v6
    v_mul_f32 v6, {fl(-1/32)}, v6
    v_lshlrev_b32 v7, 3, v4
    v_cvt_f32_u32 v7, v7
    v_mul_f32 v7, v6, v7
    """)
    for j in range(8):
        a(f"v_cos_f32 v{MRE+j}, v7\nv_sin_f32 v{MIM+j}, v7")
        if j < 7:
            a("v_add_f32 v7, v7, v6")
    a(f"""
    s_lshl_b32 {sT0}, {sQ}, 3
    v_lshrrev_b32 v6, 1, v3
    v_add_u32 v6, {sT0}, v6
    v_cvt_f32_u32 v6, v6
    v_mul_f32 v6, {fl(1/512)}, v6
    s_lshl_b32 {sT0}, {sWID}, 3
    v_lshl_add_u32 v7, v4, 5, {sT0}
    v_cvt_f32_u32 v8, v7
    v_and_b32 v9, 1, {vLANE}
    v_cvt_f32_u32 v9, v9
    v_mul_f32 v9, {fl(0.25)}, v9
    v_fmac_f32 v9, v6, v8
    v_cmp_ne_u32 vcc, 0, v7
    """)
    for j in range(8):
        for qq in range(4):
            t = 10 + 3 * ((j * 4 + qq) % 2)
            if j + qq:
                a(f"v_fmamk_f32 v{t}, v6, {fl(j + 128 * qq)}, v9")
                a(f"v_cos_f32 v{t+1}, v{t}\nv_sin_f32 v{t+2}, v{t}")
            else:
                a(f"v_cos_f32 v{t+1}, v9\nv_sin_f32 v{t+2}, v9")
            if qq < 2:
                a(f"v_mov_b32 v{ST + 2*j + qq}, 0")
            a(f"v_cvt_pk_bf16_f32 v{T1 + 4*j + qq}, v{t+1}, v{t+2}")
    a(f"v_cndmask_b32 v{T1}, 0, v{T1}, vcc")
    a(f"""
    s_mul_i32 {sT0}, {sWID}, {8*XP}
    s_add_u32 {sT0}, {sT0}, {LX}
    v_add_u32 v10, {sT0}, v2
    v_bfe_u32 v11, {vLANE}, 2, 2
    v_lshl_add_u32 v11, v4, 3, v11
    v_mul_u32_u24 v11, {XP}, v11
    v_and_b32 v12, 3, {vLANE}
    v_lshl_add_u32 v11, v12, 6, v11
    s_lshl_b32 {sT0}, {sWID}, 4
    s_add_u32 {sT0}, {sT0}, {LX}
    v_add_u32 v11, {sT0}, v11
    v_lshrrev_b32 v12, 3, {vLANE}
    s_lshl_b32 {sT0}, {sWID}, 3
    v_add_u32 v12, {sT0}, v12
    v_lshlrev_b32 v13, 1, v12
    v_lshlrev_b32 v12, 2, v12
    v_lshlrev_b32 v14, 4, v4
    v_lshlrev_b32 v15, 5, v4
    s_mov_b32 {sT1}, 0x3f803f80
    """)
    for j in range(8):
        a(f"s_waitcnt vmcnt({11-j})")
        a(f"ds_write_b128 v10, {vr(X+4*j)} offset:{j*XP}")
        for d in range(4):
            a(f"v_dot2c_f32_bf16 v{ST+2*j}, {sT1}, v{X+4*j+d}")
            a(f"v_dot2c_f32_bf16 v{ST+2*j+1}, v{X+4*j+d}, v{X+4*j+d}")
    for i in range(8):
        a(f"v_permlane32_swap_b32 v{ST+i}, v{ST+8+i}")
    for i in range(8):
        a(f"v_add_f32 v{ST+i}, v{ST+i}, v{ST+8+i}")
    for i in range(4):
        a(f"v_permlane16_swap_b32 v{ST+i}, v{ST+4+i}")
    for i in range(4):
        a(f"v_add_f32 v{ST+i}, v{ST+i}, v{ST+4+i}")
    for i in range(2):
        a(f"v_add_f32_dpp v{ST+8+i}, v{ST+i}, v{ST+i} row_ror:8 row_mask:0xf bank_mask:0x3")
    for i in range(2):
        a(f"v_add_f32_dpp v{ST+8+i}, v{ST+2+i}, v{ST+2+i} row_ror:8 row_mask:0xf bank_mask:0xc")
    for mode in ("row_half_mirror", "quad_perm:[2,3,0,1]", "quad_perm:[1,0,3,2]"):
        for i in range(2):
            a(f"v_add_f32_dpp v{ST+8+i}, v{ST+8+i}, v{ST+8+i} {mode} row_mask:0xf bank_mask:0xf")
    m, v = ST + 8, ST + 9
    a(f"""
    v_mul_f32 v{m}, {fl(1/512)}, v{m}
    v_mul_f32 v{v}, {fl(1/512)}, v{v}
    v_fma_f32 v{v}, -v{m}, v{m}, v{v}
    v_max_f32 v{v}, 0, v{v}
    v_add_f32 v{v}, {fl(1e-5)}, v{v}
    v_rsq_f32 v{v}, v{v}
    v_cvt_pk_bf16_f32 v{ST}, -v{m}, -v{m}
    v_lshlrev_b32 v{ST+1}, 16, v{ST}
    v_add_f32 v{ST+1}, v{ST+1}, v{m}
    v_cvt_pk_bf16_f32 v{ST+1}, -v{ST+1}, -v{ST+1}
    s_mov_b32 exec_lo, 0x01010101
    s_mov_b32 exec_hi, 0x01010101
    ds_write_b32 v12, v{v} offset:{LST}
    ds_write_b16 v13, v{ST} offset:{LST+128}
    ds_write_b16 v13, v{ST+1} offset:{LST+192}
    s_and_b32 {sT0}, {sJ}, 3
    s_cbranch_scc1 L_a_nomu
    s_lshl_b32 {sT0}, {sS2}, 7
    s_add_u32 {sT0}, {sT0}, {MU_OFF}
    buffer_store_dword v{m}, v12, {srd('WS')}, {sT0} offen{SC}
    L_a_nomu:
    s_mov_b64 exec, -1
    s_waitcnt lgkmcnt(0)
    s_barrier
    ds_read_b128 {vr(32)}, v15 offset:{LST}
    ds_read_b128 {vr(36)}, v15 offset:{LST+16}
    ds_read_b128 {vr(40)}, v14 offset:{LST+128}
    ds_read_b128 {vr(44)}, v14 offset:{LST+192}
    """)
    def trread(i):
        vv, qq = i // 4, i % 4
        a(f"ds_read_b64_tr_b16 {vr(X+4*i,2)}, v11 offset:{8*vv + 256*qq}")
        a(f"ds_read_b64_tr_b16 {vr(X+4*i+2,2)}, v11 offset:{8*vv + 256*qq + 4*XP}")
    for i in range(5):
        trread(i)
    a("s_waitcnt lgkmcnt(12)")
    for j in range(8):
        a(f"v_mul_f32 v{MRE+j}, v{MRE+j}, v{32+j}\nv_mul_f32 v{MIM+j}, v{MIM+j}, v{32+j}")
    a("s_waitcnt lgkmcnt(8)")
    for i in range(5, 8):
        trread(i)
    BRE, BIM, CRE, CIM = 48, 52, 56, 60
    for d in range(4):
        a(f"v_cvt_pk_bf16_f32 v{BRE+d}, v{MRE+2*d}, v{MRE+2*d+1}")
        a(f"v_cvt_pk_bf16_f32 v{BIM+d}, v{MIM+2*d}, v{MIM+2*d+1}")
    MF = "v_mfma_f32_16x16x32_bf16"
    a(f"""
    {MF} {vr(CRE)}, {vr(40)}, {vr(BRE)}, 0
    {MF} {vr(CIM)}, {vr(40)}, {vr(BIM)}, 0
    {MF} {vr(CRE)}, {vr(44)}, {vr(BRE)}, {vr(CRE)}
    {MF} {vr(CIM)}, {vr(44)}, {vr(BIM)}, {vr(CIM)}
    """)
    for i in range(8):
        a(f"s_waitcnt lgkmcnt({14-2*i})")
        a(f"{MF} {vr(DRE+4*i)}, {vr(X+4*i)}, {vr(BRE)}, {vr(CRE)}")
        a(f"{MF} {vr(DIM+4*i)}, {vr(X+4*i)}, {vr(BIM)}, {vr(CIM)}")
    a(f"""
    s_lshl_b32 {sT0}, {sWID}, 8
    s_add_u32 {sT0}, {sT0}, {LH}
    v_lshlrev_b32 v10, 12, v4
    v_lshl_add_u32 v10, v3, 4, v10
    v_add_u32 v10, {sT0}, v10
    v_lshrrev_b32 v11, 3, v3
    v_lshlrev_b32 v11, 10, v11
    v_lshl_add_u32 v11, v4, 8, v11
    v_and_b32 v12, 7, {vLANE}
    v_lshl_add_u32 v11, v12, 5, v11
    s_lshl_b32 {sT0}, {sWID}, 11
    s_add_u32 {sT0}, {sT0}, {LH}
    v_add_u32 v11, {sT0}, v11
    """)
    PA, E = 64, 16
    for vv in range(2):
        for u in range(4):
            j = 4 * vv + u
            for qq in range(4):
                a(f"v_cvt_pk_bf16_f32 v{PA+4*j+qq}, v{DRE+4*(4*vv+qq)+u}, v{DIM+4*(4*vv+qq)+u}")
            if j > 0:
                a(f"{MF} {vr(E+4*(j-1))}, {vr(PA+4*(j-1))}, {vr(T1+4*(j-1))}, 0")
    a(f"{MF} {vr(E+28)}, {vr(PA+28)}, {vr(T1+28)}, 0")
    a("s_waitcnt vmcnt(0)" if True else "")
    for d in range(8):
        a(f"v_xor_b32 v{SIN+d}, 0x80008000, v{NSIN+d}")
    for r in range(4):
        for d in range(4):
            a(f"v_cvt_pk_bf16_f32 v{PA+4*r+d}, v{E+8*d+r}, v{E+8*d+4+r}")
        a(f"ds_write_b128 v10, {vr(PA+4*r)} offset:{r*1024}")
    a(f"""
    v_lshrrev_b32 v12, 5, {vLANE}
    v_lshlrev_b32 v12, 17, v12
    v_lshl_add_u32 v12, v3, 5, v12
    v_and_b32 v13, 16, {vLANE}
    v_add_u32 v12, v12, v13
    s_lshl_b32 {sT0}, {sP}, 20
    s_lshl_b32 {sT1}, {sWID}, 18
    s_add_u32 {sT0}, {sT0}, {sT1}
    s_lshl_b32 {sT1}, {sS2}, 11
    s_add_u32 {sT0}, {sT0}, {sT1}
    s_lshl_b32 {sT1}, {sQ}, 10
    s_add_u32 {sT0}, {sT0}, {sT1}
    s_add_u32 {sT0}, {sT0}, {U_OFF}
    s_lshl_b32 {sT1}, {sWID}, 1
    s_or_b32 {sT1}, {sT1}, {sP}
    s_waitcnt lgkmcnt(0)
    s_barrier
    L_a_h2:
    ds_read_b128 {vr(64)}, v11
    ds_read_b128 {vr(68)}, v11 offset:16
    s_waitcnt lgkmcnt(1)
    {MF} {vr(16)}, {vr(64)}, {vr(COS)}, 0
    {MF} {vr(20)}, {vr(64)}, {vr(NSIN)}, 0
    {MF} {vr(24)}, {vr(64)}, {vr(COS+4)}, 0
    {MF} {vr(28)}, {vr(64)}, {vr(NSIN+4)}, 0
    s_waitcnt lgkmcnt(0)
    {MF} {vr(16)}, {vr(68)}, {vr(SIN)}, {vr(16)}
    {MF} {vr(20)}, {vr(68)}, {vr(COS)}, {vr(20)}
    {MF} {vr(24)}, {vr(68)}, {vr(SIN+4)}, {vr(24)}
    {MF} {vr(28)}, {vr(68)}, {vr(COS+4)}, {vr(28)}
    s_cmp_eq_u32 {sT1}, 99
    s_cselect_b32 exec_hi, 0, -1
    """)
    for eb in range(2):
        for r in range(4):
            a(f"v_cvt_pk_bf16_f32 v{32+4*eb+r}, v{16+8*eb+r}, v{20+8*eb+r}")
        a(f"buffer_store_dwordx4 {vr(32+4*eb)}, v12, {srd('WS')}, {sT0} offen offset:{512*eb}{SC}")
    a(f"""
    s_mov_b64 exec, -1
    s_cmp_lg_u32 {sT1}, 1
    s_cbranch_scc1 L_a_done
    s_mov_b32 {sT1}, 99
    v_add_u32 v11, 8192, v11
    s_add_u32 {sT0}, {sT0}, {8 << 17}
    s_branch L_a_h2
    L_a_done:
    """)

def row_t1(a, dst, half):
    a(f"""
    s_sub_u32 {dst}, 32, {sRB}
    s_cmp_eq_u32 {sRB}, 0
    s_cselect_b32 {dst}, 16, {dst}
    s_cmp_eq_u32 {half}, 0
    s_cselect_b32 {dst}, {sRB}, {dst}
    """)

def phase_b(a, SC):
    FR, FI, FM, UU, ACC, XX = 64, 80, 96, 128, 16, 160
    a(f"s_lshr_b32 {sT0}, {sWID}, 1")
    row_t1(a, sT1, sT0)
    a(f"""
    s_cmp_gt_u32 {sT1}, 16
    s_cselect_b32 {sT2}, {sRB}, {sT1}
    s_cselect_b32 {sT3}, 0, 0x80008000
    s_cselect_b32 {sT4}, -1, 0
    s_and_b32 {sT0}, {sWID}, 1
    s_lshl_b32 {sT0}, {sT0}, 10
    s_add_u32 {sT1}, {sT1}, {sT0}
    v_and_b32 v3, 31, {vLANE}
    v_lshrrev_b32 v4, 5, {vLANE}
    v_lshl_add_u32 v5, v3, 5, {sT1}
    v_lshlrev_b32 v6, 12, v5
    v_lshl_add_u32 v6, v4, 4, v6
    v_lshlrev_b32 v7, 10, v5
    v_lshl_add_u32 v7, v4, 4, v7
    s_lshl_b32 {sT0}, {sCB}, 6
    v_and_b32 v8, 63, v5
    v_lshlrev_b32 v8, 7, v8
    v_lshrrev_b32 v9, 6, v5
    v_lshl_add_u32 v8, v9, 2, v8
    s_mov_b32 {sT5}, {MU_OFF}
    s_waitcnt lgkmcnt(0)
    """)
    for kk in range(4):
        a(f"buffer_load_dwordx4 {vr(FR+4*kk)}, v6, {srd('SEQRE')}, 0 offen offset:{32*kk}")
        a(f"buffer_load_dwordx4 {vr(FI+4*kk)}, v6, {srd('SEQIM')}, 0 offen offset:{32*kk}")
    a(f"""
    buffer_load_dwordx4 {vr(XX)}, v7, {srd('X')}, {sT0} offen
    buffer_load_dwordx4 {vr(XX+4)}, v7, {srd('X')}, {sT0} offen offset:32
    v_and_b32 v9, 0x13, v3
    v_and_b32 v10, 4, v3
    v_lshl_or_b32 v9, v10, 1, v9
    v_and_b32 v10, 8, v3
    v_lshrrev_b32 v10, 1, v10
    v_or_b32 v9, v9, v10
    s_lshl_b32 {sT0}, {sCB}, 5
    v_add_u32 v9, {sT0}, v9
    v_xor_b32 v9, {sT4}, v9
    v_subrev_u32 v9, {sT4}, v9
    v_and_b32 v9, 511, v9
    v_and_b32 v10, 7, v9
    v_lshlrev_b32 v10, 2, v10
    v_bfe_u32 v11, v9, 3, 1
    v_lshl_add_u32 v10, v11, 10, v10
    v_lshrrev_b32 v11, 4, v9
    v_lshl_add_u32 v10, v11, 5, v10
    v_lshl_add_u32 v10, v4, 14, v10
    s_lshl_b32 {sT2}, {sT2}, 17
    s_add_u32 {sT2}, {sT2}, {U_OFF}
    buffer_load_dword v12, v8, {srd('WS')}, {sT5} offen{SC}
    """)
    for kq in range(8):
        for dd in range(0, 4, 2):
            a(f"buffer_load_dword v{UU+4*kq+dd}, v10, {srd('WS')}, {sT2} offen{SC}")
            a(f"buffer_load_dword v{UU+4*kq+dd+1}, v10, {srd('WS')}, {sT2} offen offset:2048{SC}")
            if not (kq == 7 and dd == 2):
                a(f"s_add_u32 {sT2}, {sT2}, {4096 + (16384 if (kq & 1 and dd == 2) else 0)}")
    a(f"s_mov_b32 {sT0}, 0x05040100\ns_mov_b32 {sT1}, 0x07060302\ns_waitcnt vmcnt(35)")
    for d in range(16):
        a(f"v_xor_b32 v{FI+d}, {sT3}, v{FI+d}")
    for d in range(16):
        a(f"v_perm_b32 v{FM+2*d}, v{FI+d}, v{FR+d}, {sT0}")
        a(f"v_perm_b32 v{FM+2*d+1}, v{FI+d}, v{FR+d}, {sT1}")
    a("s_waitcnt vmcnt(32)")
    for d in range(8):
        a(f"v_lshlrev_b32 v{ACC+2*d}, 16, v{XX+d}\nv_and_b32 v{ACC+2*d+1}, 0xffff0000, v{XX+d}")
    for d in range(16):
        a(f"v_sub_f32 v{ACC+d}, v{ACC+d}, v12")
    a(f"""
    s_lshl_b32 {sT0}, {sRB}, 2
    s_add_u32 {sT0}, {sT0}, {sWID}
    s_lshl_b32 {sT0}, {sT0}, 15
    s_lshl_b32 {sT1}, {sCB}, 11
    s_add_u32 {sT0}, {sT0}, {sT1}
    s_add_u32 {sT0}, {sT0}, {HC_OFF}
    v_lshlrev_b32 v2, 4, {vLANE}
    """)
    for kq in range(8):
        a(f"s_waitcnt vmcnt({28-4*kq})")
        a(f"v_mfma_f32_32x32x16_bf16 {vr(ACC,16)}, {vr(UU+4*kq)}, {vr(FM+4*kq)}, {vr(ACC,16)}")
    for ks in range(2):
        for d in range(4):
            a(f"v_cvt_pk_bf16_f32 v{32+4*ks+d}, v{ACC+8*ks+2*d}, v{ACC+8*ks+2*d+1}")
        a(f"buffer_store_dwordx4 {vr(32+4*ks)}, v2, {srd('WS')}, {sT0} offen offset:{1024*ks}{SC}")

L_G4, L_U4, L_B6 = 0, 65536, 131072
HA, ACC1 = 128, 32
WB, NWB = 224, 8

def w1_addrs(a):
    a(f"""
    v_lshrrev_b32 v3, 3, {vLANE}
    v_and_b32 v4, 7, {vLANE}
    v_mul_u32_u24 v5, 3584, v3
    v_and_b32 v6, 2, v3
    v_xor_b32 v4, v4, v6
    v_lshl_add_u32 v20, v4, 4, v5
    v_xor_b32 v21, 64, v20
    v_lshrrev_b32 v3, 2, {vLANE}
    v_and_b32 v4, 3, {vLANE}
    v_mul_u32_u24 v5, 3584, v3
    v_lshl_add_u32 v22, v4, 4, v5
    v_xor_b32 v23, 32, v22
    v_lshrrev_b32 v3, 1, {vLANE}
    v_and_b32 v4, 1, {vLANE}
    v_mul_u32_u24 v5, 3584, v3
    v_lshl_add_u32 v24, v4, 4, v5
    v_xor_b32 v3, 4, v3
    v_mul_u32_u24 v5, 3584, v3
    v_lshl_add_u32 v25, v4, 4, v5
    v_bfe_u32 v3, {vLANE}, 2, 2
    v_lshrrev_b32 v4, 5, {vLANE}
    v_lshl_add_u32 v3, v4, 3, v3
    v_bfe_u32 v4, {vLANE}, 4, 1
    v_and_b32 v5, 1, {vLANE}
    v_bfe_u32 v6, {vLANE}, 1, 1
    v_lshl_or_b32 v5, v5, 1, v6
    v_lshlrev_b32 v5, 3, v5
    v_lshl_add_u32 v8, v3, 7, v5
    v_and_b32 v6, 2, v3
    v_lshl_add_u32 v8, v6, 4, v8
    v_mul_u32_u24 v6, {L_U4 + 64}, v4
    v_add_u32 v8, v8, v6
    v_xor_b32 v9, 32, v8
    v_xor_b32 v10, 64, v8
    v_xor_b32 v11, 96, v8
    v_lshl_add_u32 v12, v3, 6, v5
    v_mul_u32_u24 v6, {32768 + 32}, v4
    v_add_u32 v12, v12, v6
    v_xor_b32 v13, 32, v12
    v_lshl_add_u32 v14, v3, 5, v5
    v_mul_u32_u24 v6, {16384 + 128}, v4
    v_add_u32 v14, v14, v6
    v_add_u32 v14, {L_B6}, v14
    v_xor_b32 v15, 128, v14
    """)

def w1_read(b, ks, dst, pairbase):
    if b < 4:
        return [f"ds_read_b64_tr_b16 {vr(dst,2,'a')}, v{8+b} offset:{2048*ks}",
                f"ds_read_b64_tr_b16 {vr(dst+2,2,'a')}, v{8+b} offset:{2048*ks+512}"]
    if b < 6:
        return [f"ds_read_b64_tr_b16 {vr(dst,2,'a')}, v{12+b-4} offset:{pairbase+1024*ks}",
                f"ds_read_b64_tr_b16 {vr(dst+2,2,'a')}, v{12+b-4} offset:{pairbase+1024*ks+256}"]
    return [f"ds_read_b64_tr_b16 {vr(dst,2,'a')}, v14 offset:{512*ks}",
            f"ds_read_b64_tr_b16 {vr(dst+2,2,'a')}, v15 offset:{512*ks}"]

def dma_group(a, n, voff, mat, soff0, sstep, lds0):
    for i in range(n):
        a(f"s_mov_b32 m0, {lds0}\ns_add_u32 {lds0}, {lds0}, 1024")
        a(f"buffer_load_dwordx4 {voff}, {srd(mat)}, {soff0} offen lds")
        a(f"s_add_u32 {soff0}, {soff0}, {sstep}")

def epi_block(acc, fb_s, SC, tmp=26):
    o = []
    for j in range(0, 8, 2):
        t0, t1 = tmp, tmp + 1
        g0, g1, u0, u1 = acc + j, acc + j + 1, acc + 8 + j, acc + 9 + j
        o += [(1, f"v_mul_f32 v{t0}, v16, v{g0}"), (1, f"v_mul_f32 v{t1}, v16, v{g1}"),
              (2, f"v_exp_f32 v{t0}, v{t0}"), (2, f"v_exp_f32 v{t1}, v{t1}"),
              (1, f"v_mul_f32 v{u0}, v{g0}, v{u0}"),
              (1, f"v_fma_f32 v{t0}, v{t0}, v17, v17"), (1, f"v_fma_f32 v{t1}, v{t1}, v17, v17"),
              (2, f"v_rcp_f32 v{t0}, v{t0}"), (2, f"v_rcp_f32 v{t1}, v{t1}"),
              (1, f"v_mul_f32 v{u1}, v{g1}, v{u1}"),
              (1, f"v_mul_f32 v{u0}, v{u0}, v{t0}"), (1, f"v_mul_f32 v{u1}, v{u1}, v{t1}"),
              (1, f"v_cvt_pk_bf16_f32 v{acc + j//2}, v{u0}, v{u1}")]
    o.append((1, f"buffer_store_dwordx4 {vr(acc)}, v2, {srd('WS')}, {fb_s[0]} offen offset:{fb_s[1]}{SC}"))
    return o

def gemm1(a, SC):
    sG4, sG2, sG1 = "s66", "s67", "s68"
    w1_addrs(a)
    a(f"""
    v_lshlrev_b32 v2, 4, {vLANE}
    s_lshl_b32 {sT0}, {sRB}, 2
    s_add_u32 {sT0}, {sT0}, {sWID}
    s_mul_i32 {sG4}, {sT0}, {GR}
    s_add_u32 {sG4}, {sG4}, {G_OFF}
    s_lshl_b32 {sT1}, {sCB}, 10
    s_add_u32 {sG1}, {sG4}, {sT1}
    s_add_u32 {sG2}, {sG1}, {sT1}
    s_lshl_b32 {sT1}, {sCB}, 12
    s_add_u32 {sG4}, {sG4}, {sT1}
    s_add_u32 {sG2}, {sG2}, {64*1024}
    s_add_u32 {sG1}, {sG1}, {96*1024}
    s_lshl_b32 {sT0}, {sT0}, 15
    s_add_u32 {sT0}, {sT0}, {HC_OFF}
    s_mul_i32 {sT4}, {sWID}, {128*3584}
    s_waitcnt lgkmcnt(0)
    """)
    for mat, v, base in (("WG", "v20", L_G4), ("WU", "v21", L_U4)):
        a(f"s_lshl_b32 {sT1}, {sCB}, 7\ns_add_u32 {sT1}, {sT1}, {sT4}\ns_lshl_b32 {sT2}, {sWID}, 14\ns_add_u32 {sT2}, {sT2}, {base}")
        dma_group(a, 16, v, mat, sT1, 8 * 3584, sT2)
    for mat, v, base in (("WG", "v24", L_B6), ("WU", "v25", L_B6 + 16384)):
        a(f"s_lshl_b32 {sT1}, {sCB}, 5\ns_add_u32 {sT1}, {sT1}, {sT4}\ns_add_u32 {sT1}, {sT1}, 3072\ns_lshl_b32 {sT2}, {sWID}, 12\ns_add_u32 {sT2}, {sT2}, {base}")
        dma_group(a, 4, v, mat, sT1, 32 * 3584, sT2)
    a("s_waitcnt vmcnt(20)")
    for ks in range(32):
        a(f"buffer_load_dwordx4 {vr(HA+4*ks)}, v2, {srd('WS')}, {sT0} offen offset:{1024*(ks%4)}{SC}")
        if ks % 4 == 3:
            a(f"s_add_u32 {sT0}, {sT0}, 4096")
    a("v_mov_b32 v18, 0\nv_mov_b32 v19, 0\ns_waitcnt vmcnt(32)\ns_barrier")
    accof = {0: 32, 1: 48, 2: 64, 3: 80, 6: 96, 4: 112, 5: 32}
    gst = {0: (sG4, 0), 1: (sG4, 1024), 2: (sG4, 2048), 3: (sG4, 3072), 4: (sG2, 0), 5: (sG2, 1024), 6: (sG1, 0)}
    seq = [(b, ks) for ks in range(32) for b in range(4)] + [(6, ks) for ks in range(32)] + [(b, ks) for ks in range(32) for b in (4, 5)]
    PD = 6
    BAR3 = 160
    issued = 0
    def issue(upto):
        nonlocal issued
        while issued < min(upto, len(seq)):
            b, ks = seq[issued]
            for l in w1_read(b, ks, WB + 4 * (issued % NWB), 0):
                a(l)
            issued += 1
    fill = []
    issue(PD)
    for i, (b, ks) in enumerate(seq):
        if i == 128:
            a(f"""
            s_barrier
            v_add_f32 v18, v18, v19
            v_mov_b32 v19, v18
            v_permlane32_swap_b32 v18, v19
            v_add_f32 v17, v18, v19
            v_mov_b32 v18, {fl(1e-5)}
            v_fmac_f32 v18, {fl(1/512)}, v17
            v_mov_b32 v17, v18
            v_rsq_f32 v16, v18
            v_mul_f32 v16, {fl(-1.4426950408889634)}, v16
            """)
            for mat, v, base in (("WG", "v22", 0), ("WU", "v23", 32768)):
                a(f"s_lshl_b32 {sT1}, {sCB}, 6\ns_add_u32 {sT1}, {sT1}, {sT4}\ns_add_u32 {sT1}, {sT1}, 2048\ns_lshl_b32 {sT2}, {sWID}, 13\ns_add_u32 {sT2}, {sT2}, {base}")
                dma_group(a, 8, v, mat, sT1, 16 * 3584, sT2)
            for bb in range(4):
                fill += epi_block(accof[bb], gst[bb], SC)
        if i == BAR3:
            a("s_waitcnt vmcnt(0)\ns_barrier")
            issue(i + PD)
            fill += epi_block(accof[6], gst[6], SC)
        if i < 128 and b == 0:
            a(f"s_waitcnt vmcnt({31-ks})")
        a(f"s_waitcnt lgkmcnt({2*(issued-i-1)})")
        c = vr(accof[b], 16)
        if b == 5 and ks == 0:
            assert len(fill) <= 53 * 4
        a(f"v_mfma_f32_32x32x16_bf16 {c}, {vr(WB+4*(i%NWB),4,'a')}, {vr(HA+4*ks)}, {c if ks else 0}")
        lim = i + 1 + PD
        if i < BAR3:
            lim = min(lim, BAR3)
        issue(lim)
        if i < 128:
            a(f"v_dot2c_f32_bf16 v{18+(b&1)}, v{HA+4*ks+b}, v{HA+4*ks+b}")
        budget = 3
        while fill and budget > 0:
            cst, l = fill.pop(0)
            a(l); budget -= cst
    fill += epi_block(accof[4], gst[4], SC) + epi_block(accof[5], gst[5], SC)
    for _, l in fill:
        a(l)

def kstep_list():
    o = []
    for b in (0, 1, 2, 3, 6, 4, 5):
        for cl in range(4):
            o.append((0, 4 * cl + b) if b < 4 else (1, 2 * cl + b - 4) if b < 6 else (2, cl))
    return o

def gemm2(a, SC):
    sC2, sHALF, sR0 = "s66", "s67", "s68"
    sF = ("s69", "s70", "s71")
    KS = kstep_list()
    a(f"""
    s_bfe_u32 {sHALF}, {sCB}, 0x10002
    s_lshr_b32 {sC2}, {sCB}, 3
    s_lshl_b32 {sC2}, {sC2}, 2
    s_and_b32 {sT0}, {sCB}, 3
    s_or_b32 {sC2}, {sC2}, {sT0}
    s_lshl_b32 {sR0}, {sRB}, 1
    s_add_u32 {sR0}, {sR0}, {sHALF}
    s_lshl_b32 {sR0}, {sR0}, 1
    s_lshl_b32 {sF[0]}, {sWID}, 4
    s_lshl_b32 {sF[1]}, {sWID}, 3
    s_add_u32 {sF[1]}, {sF[1]}, 64
    s_lshl_b32 {sF[2]}, {sWID}, 2
    s_add_u32 {sF[2]}, {sF[2]}, 96
    v_lshrrev_b32 v3, 3, {vLANE}
    v_and_b32 v4, 7, {vLANE}
    v_and_b32 v5, 2, v3
    v_lshlrev_b32 v5, 1, v5
    v_xor_b32 v4, v4, v5
    v_lshlrev_b32 v4, 4, v4
    v_lshl_add_u32 v20, v3, 10, v4
    s_lshl_b32 {sT0}, {sC2}, 7
    v_add_u32 v20, {sT0}, v20
    v_bfe_u32 v3, {vLANE}, 2, 2
    v_lshrrev_b32 v4, 5, {vLANE}
    v_lshl_add_u32 v3, v4, 3, v3
    v_and_b32 v5, 1, {vLANE}
    v_bfe_u32 v6, {vLANE}, 1, 1
    v_lshl_or_b32 v5, v5, 1, v6
    v_lshlrev_b32 v5, 3, v5
    v_lshl_add_u32 v8, v3, 7, v5
    v_and_b32 v6, 16, {vLANE}
    v_lshl_add_u32 v8, v6, 1, v8
    v_and_b32 v6, 2, v3
    v_lshl_add_u32 v8, v6, 5, v8
    s_and_b32 {sT0}, {sWID}, 1
    s_lshl_b32 {sT0}, {sT0}, 6
    v_xor_b32 v8, {sT0}, v8
    s_mul_i32 {sT0}, {sWID}, {28*1024}
    v_add_u32 v8, {sT0}, v8
    v_xor_b32 v9, 64, v8
    v_lshlrev_b32 v2, 4, {vLANE}
    s_lshr_b32 {sT0}, {sWID}, 1
    s_or_b32 {sT1}, {sR0}, {sT0}
    s_mul_i32 {sT2}, {sT1}, {GR}
    s_add_u32 {sT2}, {sT2}, {G_OFF}
    v_add_u32 v10, {sT2}, v2
    s_xor_b32 {sT1}, {sT1}, 1
    s_mul_i32 {sT2}, {sT1}, {GR}
    s_add_u32 {sT2}, {sT2}, {G_OFF}
    v_add_u32 v11, {sT2}, v2
    s_waitcnt lgkmcnt(0)
    """)
    for rnd in range(2):
        a(f"s_mul_i32 {sT2}, {sWID}, {28*1024}")
        for kk in range(14 * rnd, 14 * rnd + 14):
            bi, off = KS[kk]
            a(f"s_add_u32 {sT1}, {sF[bi]}, {off}\ns_lshl_b32 {sT1}, {sT1}, 14")
            dma_group(a, 2, "v20", "WD", sT1, 8192, sT2)
        for kk in range(14 * rnd, 14 * rnd + 14):
            kl = kk - 14 * rnd
            a(f"s_waitcnt vmcnt({2*(13-kl)})")
            for sc in range(2):
                d = 8 * kk + 4 * sc
                a(f"ds_read_b64_tr_b16 {vr(d,2,'a')}, v{8+sc} offset:{2048*kl}")
                a(f"ds_read_b64_tr_b16 {vr(d+2,2,'a')}, v{8+sc} offset:{2048*kl+512}")
            if kl % 3 == 2:
                a("s_waitcnt lgkmcnt(0)")
        a("s_waitcnt lgkmcnt(0)")
    a(f"s_lshr_b32 {sT0}, {sWID}, 1")
    row_t1(a, sT1, sHALF)
    a(f"""
    s_lshl_b32 {sT2}, {sT0}, 10
    s_add_u32 {sT1}, {sT1}, {sT2}
    v_and_b32 v3, 31, {vLANE}
    v_lshl_add_u32 v5, v3, 5, {sT1}
    v_lshlrev_b32 v5, 10, v5
    s_or_b32 {sT0}, {sT0}, {sR0}
    s_lshl_b32 {sT0}, {sT0}, 15
    s_add_u32 {sT0}, {sT0}, {HC_OFF}
    v_lshlrev_b32 v6, 4, v3
    buffer_load_ushort v12, v5, {srd('X')}, 0 offen
    buffer_load_ushort v13, v6, {srd('WS')}, {sT0} offen{SC}
    s_lshl_b32 {sT1}, {sC2}, 1
    s_and_b32 {sT2}, {sWID}, 1
    s_or_b32 {sT1}, {sT1}, {sT2}
    s_lshl_b32 {sT2}, {sT1}, 11
    s_add_u32 {sT0}, {sT0}, {sT2}
    buffer_load_dwordx4 {vr(24)}, v2, {srd('WS')}, {sT0} offen{SC}
    buffer_load_dwordx4 {vr(28)}, v2, {srd('WS')}, {sT0} offen offset:1024{SC}
    s_lshl_b32 {sT5}, {sT1}, 6
    v_lshl_add_u32 v5, v4, 4, v5
    """)
    GB, NG, ACC = 96, 20, 32
    issued = 0
    def issue(upto):
        nonlocal issued
        while issued < min(upto, 28):
            bi, off = KS[issued]
            a(f"s_add_u32 {sT1}, {sF[bi]}, {off}\ns_lshl_b32 {sT1}, {sT1}, 10")
            for sr in range(2):
                a(f"buffer_load_dwordx4 {vr(GB+8*(issued%NG)+4*sr)}, v{10+sr}, {srd('WS')}, {sT1} offen{SC}")
            issued += 1
    issue(NG)
    for kk in range(28):
        a(f"s_waitcnt vmcnt({2*(issued-kk-1)})")
        for sr in range(2):
            for sc in range(2):
                c = vr(ACC + 16 * (2 * sr + sc), 16)
                a(f"v_mfma_f32_32x32x16_bf16 {c}, {vr(8*kk+4*sc,4,'a')}, {vr(GB+8*(kk%NG)+4*sr)}, {c if kk else 0}")
        issue(kk + 1 + NG)
    a("s_barrier")
    for s in range(1, 4):
        a(f"s_xor_b32 {sT0}, {sWID}, {s}\ns_mul_i32 {sT0}, {sT0}, 12288\nv_add_u32 v{6+s}, {sT0}, v2")
    a(f"s_mul_i32 {sT0}, {sWID}, 12288\nv_add_u32 v6, {sT0}, v2")
    for s in range(1, 4):
        for qd in range(4):
            a(f"ds_write_b128 v{6+s}, {vr(ACC+16*s+4*qd)} offset:{4096*(s-1)+1024*qd}")
    a(f"v_lshlrev_b32 v12, 16, v12\nv_lshlrev_b32 v13, 16, v13\nv_sub_f32 v12, v12, v13")
    for d in range(8):
        a(f"v_lshlrev_b32 v14, 16, v{24+d}\nv_and_b32 v15, 0xffff0000, v{24+d}")
        a(f"v_add_f32 v14, v14, v12\nv_add_f32 v15, v15, v12")
        a(f"v_add_f32 v{ACC+2*d}, v{ACC+2*d}, v14\nv_add_f32 v{ACC+2*d+1}, v{ACC+2*d+1}, v15")
    a("s_waitcnt lgkmcnt(0)\ns_barrier")
    for qd in range(4):
        for s in range(1, 4):
            a(f"ds_read_b128 {vr(ACC+16*s+4*qd)}, v6 offset:{4096*(s-1)+1024*qd}")
    for qd in range(4):
        a(f"s_waitcnt lgkmcnt({9-3*qd})")
        for r in range(4):
            x = ACC + 4 * qd + r
            a(f"v_add_f32 v{x}, v{x}, v{x+16}\nv_add_f32 v{x+32}, v{x+32}, v{x+48}\nv_add_f32 v{x}, v{x}, v{x+32}")
        a(f"v_cvt_pk_bf16_f32 v{24+2*qd}, v{ACC+4*qd}, v{ACC+4*qd+1}\nv_cvt_pk_bf16_f32 v{25+2*qd}, v{ACC+4*qd+2}, v{ACC+4*qd+3}")
        if qd & 1:
            a(f"buffer_store_dwordx4 {vr(24+4*(qd>>1))}, v5, {srd('OUT')}, {sT5} offen offset:{32*(qd>>1)}")

def build(extra_empty=0):
    ks = [("fa_kernel", ("X", "WS", "HIDRE", "HIDIM"), phase_a, 65536, 256, 256),
          ("fb_kernel", ("X", "WS", "SEQRE", "SEQIM"), phase_b, 0, 256, 256),
          ("g1_kernel", ("WS", "WG", "WU"), gemm1, 163840, 512, 256),
          ("g2_kernel", ("X", "WS", "WD", "OUT"), gemm2, 131072, 512, 256)]
    head = open(f"cdna_kernels/{NAME}.s.ref").read().split("; Override launch")[0]
    for n, _, _, lds, _, _ in ks:
        head += f"; @launch kernel={n} grid=(256,1,1) block=(256,1,1) lds={lds}\n"
    for i in range(extra_empty):
        head += f"; @launch kernel=nop_kernel grid=(256,1,1) block=(256,1,1) lds=0\n"
    txt = head + HEAD
    for n, names, fn, lds, nv, acc in ks:
        a = Asm()
        prologue(a, names, f"L_end_{n}")
        fn(a, "")
        a(f"L_end_{n}:\ns_endpgm")
        lines, added = hazard.fix(a.lines)
        print(f"{n}: {len(lines)} lines, {added} wait states added", file=sys.stderr)
        txt += kernel_open(n) + "\n".join(lines) + "\n"
    if extra_empty:
        txt += kernel_open("nop_kernel") + "    s_endpgm\n"
    txt += '.section .rodata,"a"\n'
    for n, _, _, _, nv, acc in ks:
        txt += descriptor(n, nv, 96, acc)
    if extra_empty:
        txt += descriptor("nop_kernel", 8, 16)
    return txt

if __name__ == "__main__":
    out = sys.argv[1] if len(sys.argv) > 1 else "k4.s"
    open(out, "w").write(build(int(sys.argv[2]) if len(sys.argv) > 2 else 0))
```

```python
import struct, sys
from asmlib import *
import hazard

NAME = "sequential_preLN__spectral_fnet__swiglu_ffn__prompt"
U_OFF, MU_OFF, SS_OFF, F1_OFF, F2_OFF, EP_OFF = 0, 0x240000, 0x244000, 0x268000, 0x270000, 0x27F000
HC_OFF, G_OFF, STAMP_OFF, P_OFF, WS_BYTES = 0x280000, 0x480000, 0xBC0000, 0xC00000, 0x1200000
GR = 112 * 1024
SPIN = 4000

SRD = dict(X=4, WS=8, WG=12, WU=16, WD=20, OUT=24, TMP=28)
KOFF = dict(X=0, WG=48, WU=56, WD=64, OUT=72, WS=88)
SIZE = dict(X=2097152, WG=1835008, WU=1835008, WD=1835008, OUT=2097152, WS=WS_BYTES, TMP=1835008)
srd = lambda n: f"s[{SRD[n]}:{SRD[n]+3}]"
fl = lambda x: hex(struct.unpack("<I", struct.pack("<f", x))[0])
vr = lambda b, n=4, p="v": f"{p}[{b}:{b+n-1}]"
ar = lambda b, n=4: vr(b, n, "a")
MF16, MF32 = "v_mfma_f32_16x16x32_bf16", "v_mfma_f32_32x32x16_bf16"

sWID, sXCD, sJ, sRB, sCB, sTAG, sR = "s32", "s33", "s34", "s35", "s36", "s37", "s38"
sT = [f"s{39+i}" for i in range(9)]
sGQ = [f"s{48+i}" for i in range(4)]
sGP = [f"s{52+i}" for i in range(4)]
sGS = [f"s{56+i}" for i in range(4)]
sS2, sQ, sP, sWROW, sT1C, sPIN, sM0, sSO = "s60", "s61", "s62", "s63", "s64", "s65", "s66", "s67"
vL, vL16 = "v1", "v2"
L_UQ, L_S = 65536, 131072
XP = 1040
LX = 163840 - 50176
LST = LX + 32 * XP
LH = LST + 512

class K(Asm):
    def __init__(self, cfg):
        super().__init__()
        self.cfg = cfg
        self.vmlog = []
        self.nst = 0
        self.tail = []
        self.slots = 0
    def __call__(self, s=""):
        n = len(self.lines)
        super().__call__(s)
        for l in self.lines[n:]:
            t = l.strip()
            if t.startswith("v_mfma"): self.slots = 0
            elif not t.endswith(":"): self.slots += 2 if t.startswith(hazard.TRANS) else 1
    def vm(self, ins, tag, cond=False):
        self(ins)
        self.vmlog.append((tag, cond))
    def wait(self, *tags):
        last = max(i for i, (t, _) in enumerate(self.vmlog) if t in tags)
        n = sum(1 for (t, c) in self.vmlog[last + 1:] if not c)
        assert n < 64
        self(f"s_waitcnt vmcnt({n})")
    def stamp(self, name):
        if self.cfg.get("stamps"):
            self(f"s_memrealtime s[{68+2*self.nst}:{69+2*self.nst}]")
            self.cfg.setdefault("names", []).append(name)
            self.nst += 1
            assert self.nst <= 16

def dma(a, voff, mat, tag, step_src):
    a.vm(f"buffer_load_dwordx4 {voff}, {srd(mat)}, {sSO} offen lds", tag)
    a(f"s_add_u32 m0, m0, 1024\ns_add_u32 {sSO}, {sSO}, {step_src}")

def dma_setup(a, colshift, colbase, ldsshift, ldsbase):
    a(f"""
    s_lshl_b32 {sM0}, {sWID}, {ldsshift}
    s_add_u32 m0, {sM0}, {ldsbase}
    s_lshl_b32 {sSO}, {sCB}, {colshift}
    s_add_u32 {sSO}, {sSO}, {sWROW}
    s_add_u32 {sSO}, {sSO}, {colbase}
    """)

vDQ, vDQU, vDP, vDPU, vDS, vDSU = "v20", "v21", "v22", "v23", "v24", "v25"
vRQ = [8, 9, 10, 11]
vRS = [14, 15]

def spin_flags(a, name, ld, cmp_lines):
    a(f"s_mov_b32 {sT[8]}, 0\nL_{name}:")
    a.vm(ld, name)
    a(f"s_add_u32 {sT[8]}, {sT[8]}, 1\ns_cmp_gt_u32 {sT[8]}, {SPIN}\ns_waitcnt vmcnt(0)\ns_cbranch_scc1 L_{name}_ok")
    a(cmp_lines)
    a(f"s_cbranch_vccnz L_{name}\nL_{name}_ok:")

def clears(a):
    a("v_mov_b32 v28, -1\nv_mov_b32 v29, -1\nv_mov_b32 v30, -1\nv_mov_b32 v31, -1")
    for s, n in ((sGQ[0], 4), (sGP[0], 2), (sGS[0], 1)):
        for i in range(n):
            a.vm(f"buffer_store_dwordx4 v[28:31], {vL16}, {srd('WS')}, {s} offen offset:{1024*i} sc1", "clr")
    a(f"s_add_u32 {sT[0]}, {sPIN}, 4096")
    for i in range(6):
        a.vm(f"buffer_store_dwordx4 v[28:31], {vL16}, {srd('WS')}, {sPIN if i < 4 else sT[0]} offen offset:{1024*(i%4)} sc1", "clr")

def prologue(a):
    cfg = a.cfg
    a.stamp("start")
    a("s_cmp_ge_u32 s2, 256\ns_cbranch_scc1 L_end")
    for n in ("X", "WS", "WG", "WU", "WD", "OUT"):
        a(f"s_load_dwordx2 s[{SRD[n]}:{SRD[n]+1}], s[0:1], {KOFF[n]}")
    a(f"v_lshrrev_b32 v2, 6, v0\nv_and_b32 {vL}, 63, v0\nv_readfirstlane_b32 {sWID}, v2")
    for n in SRD:
        a(f"s_mov_b32 s{SRD[n]+2}, {SIZE[n]}\ns_mov_b32 s{SRD[n]+3}, 0x20000")
    a(f"""
    s_and_b32 {sXCD}, s2, 7
    s_lshr_b32 {sJ}, s2, 3
    s_lshr_b32 {sS2}, {sJ}, 2
    s_lshl_b32 {sS2}, {sS2}, 3
    s_or_b32 {sS2}, {sS2}, {sXCD}
    s_lshl_b32 {sT[0]}, {sWID}, 19
    s_lshl_b32 {sT[1]}, {sS2}, 10
    s_add_u32 {sT[0]}, {sT[0]}, {sT[1]}
    s_add_u32 {sT[1]}, {sT[0]}, 0x40000
    v_lshlrev_b32 {vL16}, 4, {vL}
    v_and_b32 v3, 15, {vL}
    v_lshrrev_b32 v4, 4, {vL}
    v_and_b32 v5, 3, {vL}
    v_lshl_add_u32 v5, v4, 2, v5
    v_lshlrev_b32 v5, 4, v5
    v_lshrrev_b32 v6, 2, v3
    v_lshl_add_u32 v7, v6, 16, v5
    s_and_b32 {sQ}, {sJ}, 1
    s_bfe_u32 {sP}, {sJ}, 0x10001
    s_waitcnt lgkmcnt(0)
    """)
    X = 64
    for i in range(8):
        a.vm(f"buffer_load_dwordx4 {vr(X+4*i)}, v7, {srd('X')}, {sT[i//4]} offen offset:{256*(i%4)}", f"x{i}")
    a(f"""
    s_add_u32 s44, s8, {EP_OFF}
    s_addc_u32 s45, s9, 0
    s_load_dword {sTAG}, s[44:45], 0
    s_and_b32 {sRB}, {sXCD}, 1
    s_lshl_b32 {sRB}, {sRB}, 3
    s_and_b32 {sT[0]}, {sJ}, 7
    s_or_b32 {sRB}, {sRB}, {sT[0]}
    s_lshr_b32 {sCB}, {sXCD}, 1
    s_lshl_b32 {sCB}, {sCB}, 2
    s_lshr_b32 {sT[0]}, {sJ}, 3
    s_or_b32 {sCB}, {sCB}, {sT[0]}
    s_lshl_b32 {sR}, {sRB}, 2
    s_add_u32 {sR}, {sR}, {sWID}
    s_mul_i32 {sWROW}, {sWID}, {128*3584}
    """)
    if cfg.get("warm", 1):
        a(f"""
        s_bitcmp1_b32 {sWID}, 0
        s_cselect_b32 s28, s16, s12
        s_cselect_b32 s29, s17, s13
        s_lshl_b32 {sT[0]}, {sJ}, 1
        s_lshr_b32 {sT[1]}, {sWID}, 1
        s_add_u32 {sT[0]}, {sT[0]}, {sT[1]}
        s_mul_i32 {sT[0]}, {sT[0]}, {8*3584}
        s_lshr_b32 {sT[1]}, {sXCD}, 1
        v_and_b32 v8, 7, {vL}
        v_min_u32 v8, 6, v8
        v_lshrrev_b32 v9, 2, v8
        v_lshrrev_b32 v10, 1, v8
        v_and_b32 v10, v10, v9
        v_add_u32 v11, v9, v10
        v_lshrrev_b32 v12, v11, 4
        v_mul_u32_u24 v12, {sT[1]}, v12
        v_add_u32 v12, v12, v8
        v_mul_u32_u24 v9, 12, v9
        v_mul_u32_u24 v10, 6, v10
        v_add3_u32 v12, v12, v9, v10
        v_lshrrev_b32 v9, 3, {vL}
        v_mul_u32_u24 v9, 3584, v9
        v_lshl_add_u32 v12, v12, 7, v9
        """)
        a.vm(f"buffer_load_dword v0, v12, {srd('TMP')}, {sT[0]} offen", "warm")
        a(f"""
        s_lshl2_add_u32 {sT[0]}, {sJ}, {sWID}
        s_cmp_lt_u32 {sT[0]}, 48
        s_cselect_b32 {sT[2]}, 2, 3
        s_cselect_b32 {sT[3]}, 16, 8
        s_cmp_lt_u32 {sT[0]}, 32
        s_cselect_b32 {sT[2]}, 0, {sT[2]}
        s_cselect_b32 {sT[3]}, 32, {sT[3]}
        s_mul_i32 {sT[1]}, {sT[1]}, {sT[3]}
        s_mul_i32 {sT[2]}, {sT[2]}, 48
        s_add_u32 {sT[1]}, {sT[1]}, {sT[2]}
        s_add_u32 {sT[1]}, {sT[1]}, {sT[0]}
        s_cmp_lt_u32 {sT[0]}, 56
        s_cselect_b32 {sT[1]}, {sT[1]}, 0x1000
        s_lshl_b32 {sT[1]}, {sT[1]}, 13
        v_lshlrev_b32 v12, 7, {vL}
        """)
        a.vm(f"buffer_load_dword v0, v12, {srd('WD')}, {sT[1]} offen", "warm")
    a(f"s_mul_i32 {sT[0]}, {sR}, {GR}\ns_add_u32 {sT[0]}, {sT[0]}, {G_OFF}")
    for sg in range(4):
        a(f"""
        s_xor_b32 {sT[1]}, {sCB}, {sg}
        s_lshl_b32 {sT[1]}, {sT[1]}, 10
        s_add_u32 {sGS[sg]}, {sT[0]}, {sT[1]}
        s_add_u32 {sGP[sg]}, {sGS[sg]}, {sT[1]}
        s_lshl2_add_u32 {sGQ[sg]}, {sT[1]}, {sT[0]}
        s_add_u32 {sGP[sg]}, {sGP[sg]}, {64*1024}
        s_add_u32 {sGS[sg]}, {sGS[sg]}, {96*1024}
        """)
    a(f"""
    s_lshl_b32 {sPIN}, {sR}, 4
    s_add_u32 {sPIN}, {sPIN}, {sCB}
    s_mul_i32 {sPIN}, {sPIN}, 6144
    s_add_u32 {sPIN}, {sPIN}, {P_OFF}
    """)
    if cfg.get("clear_at", "start") == "start":
        clears(a)

def w1_addrs(a):
    a(f"""
    v_lshrrev_b32 v26, 3, {vL}
    v_and_b32 v27, 7, {vL}
    v_mul_u32_u24 v28, 3584, v26
    v_and_b32 v26, 2, v26
    v_xor_b32 v27, v27, v26
    v_lshl_add_u32 {vDQ}, v27, 4, v28
    v_xor_b32 {vDQU}, 64, {vDQ}
    v_lshrrev_b32 v26, 1, {vL}
    v_and_b32 v27, 1, {vL}
    v_mul_u32_u24 v28, 3584, v26
    v_lshl_add_u32 {vDS}, v27, 4, v28
    v_xor_b32 v26, 4, v26
    v_mul_u32_u24 v28, 3584, v26
    v_lshl_add_u32 {vDSU}, v27, 4, v28
    v_bfe_u32 v26, {vL}, 2, 2
    v_lshrrev_b32 v27, 5, {vL}
    v_lshl_add_u32 v26, v27, 3, v26
    v_bfe_u32 v27, {vL}, 4, 1
    v_and_b32 v28, 1, {vL}
    v_bfe_u32 v29, {vL}, 1, 1
    v_lshl_or_b32 v28, v28, 1, v29
    v_lshlrev_b32 v28, 3, v28
    v_lshl_add_u32 v8, v26, 7, v28
    v_and_b32 v29, 2, v26
    v_lshl_add_u32 v8, v29, 4, v8
    v_mul_u32_u24 v29, {L_UQ + 64}, v27
    v_add_u32 v8, v8, v29
    v_xor_b32 v9, 32, v8
    v_xor_b32 v10, 64, v8
    v_xor_b32 v11, 96, v8
    v_lshl_add_u32 v12, v26, 6, v28
    v_mul_u32_u24 v29, {32768 + 32}, v27
    v_add_u32 v12, v12, v29
    v_xor_b32 v13, 32, v12
    v_lshl_add_u32 v14, v26, 5, v28
    v_mul_u32_u24 v29, {16384 + 128}, v27
    v_add_u32 v14, v14, v29
    v_add_u32 v14, {L_S}, v14
    v_xor_b32 v15, 128, v14
    """)

def phase_a(a):
    X, T1, COS, NSIN, SIN, MRE, MIM = 64, 96, 128, 136, 144, 152, 160
    DRE, DIM = 168, 200
    ONE_E, ONE_O, GA, GB, SM = 232, 236, 240, 244, 248
    pairq = [("WG", vDP, 0), ("WU", vDPU, 32768)]
    npair = [0]
    def pair_dma(n=1):
        for _ in range(n):
            i = npair[0]
            if i >= 16: return
            mat, v, base = pairq[i // 8]
            if i % 8 == 0:
                dma_setup(a, 6, 2048, 13, base)
            dma(a, v, mat, "pair", 16 * 3584)
            npair[0] += 1
    a(f"""
    v_mul_u32_u24 v16, {XP}, v6
    s_mul_i32 {sT[0]}, {sWID}, {8*XP}
    s_add_u32 {sT[0]}, {sT[0]}, {LX}
    v_add3_u32 v16, v16, v5, {sT[0]}
    v_and_b32 v9, 1, {vL}
    v_cmp_eq_u32 vcc, 1, v9
    v_mov_b32 v10, 0x3f803f80
    v_cndmask_b32 v{ONE_O}, 0, v10, vcc
    v_xor_b32 v{ONE_E}, v10, v{ONE_O}
    """)
    for d in range(1, 4):
        a(f"v_mov_b32 v{ONE_O+d}, v{ONE_O}\nv_mov_b32 v{ONE_E+d}, v{ONE_E}")
    a(f"""
    s_lshl_b32 {sT[0]}, {sP}, 3
    v_add_u32 v10, {sT[0]}, v3
    v_cvt_f32_u32 v11, v10
    v_mul_f32 v11, {fl(-1/32)}, v11
    v_lshlrev_b32 v12, 3, v4
    v_cvt_f32_u32 v12, v12
    v_mul_f32 v12, v11, v12
    """)
    for j in range(8):
        a(f"v_cos_f32 v{MRE+j}, v12\nv_sin_f32 v{MIM+j}, v12")
        if j < 7: a("v_add_f32 v12, v12, v11")
    a(f"""
    v_lshrrev_b32 v11, 5, {vL}
    v_lshlrev_b32 v11, 17, v11
    v_and_b32 v12, 16, {vL}
    v_lshl_add_u32 v18, v10, 5, v12
    v_xor_b32 v19, 512, v18
    v_add_u32 v18, v18, v11
    v_add_u32 v19, v19, v11
    v_lshrrev_b32 v26, 2, {vL}
    v_and_b32 v27, 3, {vL}
    v_mul_u32_u24 v28, 3584, v26
    v_lshl_add_u32 {vDP}, v27, 4, v28
    v_xor_b32 {vDPU}, 32, {vDP}
    """)
    for d in range(4):
        a(f"v_cvt_pk_bf16_f32 v{COS+d}, v{MRE+2*d}, v{MRE+2*d+1}\nv_cvt_pk_bf16_f32 v{NSIN+d}, v{MIM+2*d}, v{MIM+2*d+1}")
    a(f"s_mov_b32 {sT[2]}, 0x80000000\ns_mov_b32 {sT[3]}, 0x80008000\ns_mov_b32 {sT[4]}, 0x8000")
    for d in range(4):
        a(f"v_xor_b32 v{COS+4+d}, {sT[2]}, v{COS+d}\nv_xor_b32 v{NSIN+4+d}, {sT[2]}, v{NSIN+d}")
        a(f"v_xor_b32 v{SIN+d}, {sT[3]}, v{NSIN+d}\nv_xor_b32 v{SIN+4+d}, {sT[4]}, v{NSIN+d}")
    a(f"""
    s_lshl_b32 {sT[0]}, {sQ}, 3
    v_lshrrev_b32 v10, 1, v3
    v_add_u32 v10, {sT[0]}, v10
    v_cvt_f32_u32 v11, v10
    v_mul_f32 v11, {fl(1/512)}, v11
    s_lshl_b32 {sT[0]}, {sWID}, 3
    v_lshl_add_u32 v12, v4, 5, {sT[0]}
    v_cvt_f32_u32 v13, v12
    v_cmp_ne_u32 s[46:47], 0, v12
    v_cvt_f32_u32 v12, v9
    v_mul_f32 v12, {fl(0.25)}, v12
    v_fmac_f32 v12, v11, v13
    v_and_b32 v13, 1, v10
    v_lshlrev_b32 v14, 4, v13
    v_mul_lo_u32 v15, v13, {sT[3]}
    v_bfe_u32 v10, v10, 1, 1
    v_mul_lo_u32 v10, v10, {sT[3]}
    v_lshlrev_b32 v13, 15, v13
    v_xor_b32 v13, v13, v10
    """)
    for j in range(8):
        t = T1 + 4 * j
        a(f"v_cos_f32 v26, v12\nv_sin_f32 v27, v12")
        if j < 7: a("v_add_f32 v12, v12, v11")
        a(f"""
        v_cvt_pk_bf16_f32 v{t}, v26, v27
        v_alignbit_b32 v{t+1}, v{t}, v{t}, v14
        v_xor_b32 v{t+2}, v15, v{t}
        v_xor_b32 v{t+1}, v13, v{t+1}
        v_xor_b32 v{t+3}, v15, v{t+1}
        """)
    a(f"""
    v_cndmask_b32 v{T1}, 0, v{T1}, s[46:47]
    v_lshl_add_u32 v11, v4, 3, v6
    v_mul_u32_u24 v11, {XP}, v11
    v_and_b32 v12, 3, {vL}
    v_lshl_add_u32 v11, v12, 6, v11
    s_lshl_b32 {sT[0]}, {sWID}, 4
    s_add_u32 {sT[0]}, {sT[0]}, {LX}
    v_add_u32 v17, {sT[0]}, v11
    v_lshl_add_u32 v12, v9, 2, v4
    s_lshl_b32 {sT[0]}, {sWID}, 3
    v_add_u32 v12, {sT[0]}, v12
    s_mov_b32 {sT[0]}, {LST}
    v_lshl_add_u32 v13, v12, 1, {sT[0]}
    v_lshl_add_u32 v12, v12, 2, {sT[0]}
    v_lshl_add_u32 v14, v4, 4, {sT[0]}
    v_lshl_add_u32 v15, v4, 5, {sT[0]}
    s_lshl_b32 {sT[0]}, {sWID}, 8
    s_add_u32 {sT[0]}, {sT[0]}, {LH}
    v_lshlrev_b32 v10, 12, v4
    v_lshl_add_u32 v10, v3, 4, v10
    v_add_u32 v10, {sT[0]}, v10
    v_lshrrev_b32 v11, 3, v3
    v_lshlrev_b32 v11, 10, v11
    v_lshl_add_u32 v11, v4, 8, v11
    v_and_b32 v26, 7, {vL}
    v_lshl_add_u32 v11, v26, 5, v11
    s_lshl_b32 {sT[0]}, {sWID}, 11
    s_add_u32 {sT[0]}, {sT[0]}, {LH}
    v_add_u32 v11, {sT[0]}, v11
    s_waitcnt lgkmcnt(0)
    s_add_u32 {sTAG}, {sTAG}, 0x9e3779b9
    """)
    a.stamp("tables")
    for i in range(8):
        a.wait(f"x{i}")
        if i == 0: a.stamp("x0")
        g = GA if i < 4 else GB
        a(f"{MF16} {vr(g)}, {vr(X+4*i)}, {vr(X+4*i)}, {vr(g) if i % 4 else 0}")
        a(f"ds_write_b128 v16, {vr(X+4*i)} offset:{(i//4)*4*XP + 256*(i%4)}")
        a(f"{MF16} {vr(SM)}, {vr(X+4*i)}, {vr(ONE_E if i < 4 else ONE_O)}, {vr(SM) if i else 0}")
    pair_dma(2)
    for g, t in ((GA, 26), (GB, 27)):
        a(f"v_mov_b32_dpp v{t}, v{g} quad_perm:[0,0,0,0] row_mask:0xf bank_mask:0xf")
    for c in range(1, 4):
        for g, t in ((GA, 26), (GB, 27)):
            a(f"v_add_f32_dpp v{t}, v{g+c}, v{t} quad_perm:[{c},{c},{c},{c}] row_mask:0xf bank_mask:0xf")
        a(f"v_add_f32 v{SM}, v{SM}, v{SM+c}")
    a(f"""
    v_cndmask_b32 v27, v26, v27, vcc
    v_mul_f32 v26, {fl(1/512)}, v{SM}
    v_mul_f32 v27, {fl(1/512)}, v27
    v_fma_f32 v27, -v26, v26, v27
    v_max_f32 v27, 0, v27
    v_add_f32 v27, {fl(1e-5)}, v27
    v_rsq_f32 v27, v27
    v_cvt_pk_bf16_f32 v28, -v26, -v26
    v_lshlrev_b32 v29, 16, v28
    v_add_f32 v29, v29, v26
    v_cvt_pk_bf16_f32 v29, -v29, -v29
    s_mov_b32 exec_lo, 0x00300003
    s_mov_b32 exec_hi, 0x30000300
    ds_write_b32 v12, v27
    ds_write_b16 v13, v28 offset:128
    ds_write_b16 v13, v29 offset:192
    ds_write_b32 v12, v26 offset:256
    s_mov_b64 exec, -1
    """)
    pair_dma(1)
    a("s_waitcnt lgkmcnt(0)\ns_barrier")
    a.stamp("B1")
    a(f"""
    ds_read_b128 {vr(32)}, v15
    ds_read_b128 {vr(36)}, v15 offset:16
    ds_read_b128 {vr(40)}, v14 offset:128
    ds_read_b128 {vr(44)}, v14 offset:192
    """)
    def trread(i):
        vv, qq = i // 4, i % 4
        a(f"ds_read_b64_tr_b16 {vr(X+4*i,2)}, v17 offset:{8*vv + 256*qq}")
        a(f"ds_read_b64_tr_b16 {vr(X+4*i+2,2)}, v17 offset:{8*vv + 256*qq + 4*XP}")
    for i in range(5): trread(i)
    pair_dma(2)
    BRE, BIM, CRE, CIM = 48, 52, 56, 60
    a("s_waitcnt lgkmcnt(12)")
    for j in range(8):
        a(f"v_mul_f32 v{MRE+j}, v{MRE+j}, v{32+j}")
    for d in range(4):
        a(f"v_cvt_pk_bf16_f32 v{BRE+d}, v{MRE+2*d}, v{MRE+2*d+1}")
    a("s_waitcnt lgkmcnt(8)")
    for i in range(5, 8): trread(i)
    a(f"{MF16} {vr(CRE)}, {vr(40)}, {vr(BRE)}, 0")
    for j in range(4): a(f"v_mul_f32 v{MIM+j}, v{MIM+j}, v{32+j}")
    a(f"{MF16} {vr(CRE)}, {vr(44)}, {vr(BRE)}, {vr(CRE)}")
    for j in range(4, 8): a(f"v_mul_f32 v{MIM+j}, v{MIM+j}, v{32+j}")
    for i in range(4):
        a(f"s_waitcnt lgkmcnt({14-2*i})")
        a(f"{MF16} {vr(DRE+4*i)}, {vr(X+4*i)}, {vr(BRE)}, {vr(CRE)}")
        a(f"v_cvt_pk_bf16_f32 v{BIM+i}, v{MIM+2*i}, v{MIM+2*i+1}")
    a(f"{MF16} {vr(CIM)}, {vr(40)}, {vr(BIM)}, 0\n{MF16} {vr(CIM)}, {vr(44)}, {vr(BIM)}, {vr(CIM)}")
    for i in range(4):
        a(f"{MF16} {vr(DIM+4*i)}, {vr(X+4*i)}, {vr(BIM)}, {vr(CIM)}")
    pair_dma(1)
    a("s_waitcnt lgkmcnt(0)")
    for i in range(4, 8):
        a(f"{MF16} {vr(DRE+4*i)}, {vr(X+4*i)}, {vr(BRE)}, {vr(CRE)}")
    PA = 64
    def pack(j):
        vv, u = j // 4, j % 4
        return [f"v_cvt_pk_bf16_f32 v{PA+4*j+qq}, v{DRE+4*(4*vv+qq)+u}, v{DIM+4*(4*vv+qq)+u}" for qq in range(4)]
    for i in range(4, 8):
        a(f"{MF16} {vr(DIM+4*i)}, {vr(X+4*i)}, {vr(BIM)}, {vr(CIM)}")
        a("\n".join(pack(i - 4)))
    EE = [152, 156, 160, 164, 232, 236, 240, 244]
    for j in range(4):
        a(f"{MF16} {vr(EE[j])}, {vr(PA+4*j)}, {vr(T1+4*j)}, 0")
        a("\n".join(pack(4 + j)))
    for j in range(4, 8):
        a(f"{MF16} {vr(EE[j])}, {vr(PA+4*j)}, {vr(T1+4*j)}, 0")
    pair_dma(2)
    for r in range(4):
        for d in range(4):
            a(f"v_cvt_pk_bf16_f32 v{32+4*r+d}, v{EE[2*d]+r}, v{EE[2*d+1]+r}")
        a(f"ds_write_b128 v10, {vr(32+4*r)} offset:{r*1024}")
    a(f"""
    s_lshl_b32 {sT[5]}, {sP}, 2
    s_add_u32 {sT[5]}, {sT[5]}, {sWID}
    s_lshl_b32 {sT[0]}, {sT[5]}, 18
    s_lshl_b32 {sT[1]}, {sS2}, 11
    s_add_u32 {sT[0]}, {sT[0]}, {sT[1]}
    s_lshl_b32 {sT[1]}, {sQ}, 10
    s_add_u32 {sT[0]}, {sT[0]}, {sT[1]}
    s_mov_b32 {sT[1]}, {sT[5]}
    """)
    pair_dma(1)
    a("s_waitcnt lgkmcnt(0)\ns_barrier")
    a.stamp("B2")
    a(f"""
    L_a_h2:
    ds_read_b128 {vr(64)}, v11
    ds_read_b128 {vr(68)}, v11 offset:16
    s_waitcnt lgkmcnt(1)
    {MF16} {vr(32)}, {vr(64)}, {vr(COS)}, 0
    {MF16} {vr(36)}, {vr(64)}, {vr(NSIN)}, 0
    s_waitcnt lgkmcnt(0)
    {MF16} {vr(32)}, {vr(68)}, {vr(SIN)}, {vr(32)}
    {MF16} {vr(36)}, {vr(68)}, {vr(COS)}, {vr(36)}
    {MF16} {vr(40)}, {vr(64)}, {vr(COS+4)}, 0
    {MF16} {vr(44)}, {vr(64)}, {vr(NSIN+4)}, 0
    {MF16} {vr(40)}, {vr(68)}, {vr(SIN+4)}, {vr(40)}
    {MF16} {vr(44)}, {vr(68)}, {vr(COS+4)}, {vr(44)}
    s_cmp_eq_u32 {sT[1]}, 99
    s_cselect_b32 exec_hi, 0, -1
    """)
    for eb in range(2):
        for r in range(4):
            a(f"v_cvt_pk_bf16_f32 v{48+4*eb+r}, v{32+8*eb+r}, v{36+8*eb+r}")
        a.vm(f"buffer_store_dwordx4 {vr(48+4*eb)}, v{18+eb}, {srd('WS')}, {sT[0]} offen sc1", "ust")
    a(f"""
    s_mov_b64 exec, -1
    s_cmp_lg_u32 {sT[1]}, 4
    s_cbranch_scc1 L_a_done
    s_mov_b32 {sT[1]}, 99
    v_add_u32 v11, 8192, v11
    s_add_u32 {sT[0]}, {sT[0]}, {8 << 17}
    s_branch L_a_h2
    L_a_done:
    s_and_b32 {sT[0]}, {sS2}, 31
    s_sub_u32 {sT[1]}, 32, {sT[0]}
    s_min_u32 {sT[0]}, {sT[0]}, {sT[1]}
    s_lshr_b32 {sT[1]}, {sT[0]}, 1
    s_cmp_eq_u32 {sT[0]}, 16
    s_cselect_b32 {sT[1]}, 4, {sT[1]}
    s_lshl_b32 {sT[0]}, {sQ}, 4
    s_add_u32 {sT[0]}, {sT[0]}, {sT[5]}
    s_cmp_lg_u32 {sT[0]}, {sT[1]}
    s_cbranch_scc1 L_a_nomu
    v_lshlrev_b32 v26, 2, {vL}
    v_add_u32 v27, {LST + 256}, v26
    s_mov_b32 exec_hi, 0
    ds_read_b32 v27, v27
    s_lshl_b32 {sT[0]}, {sS2}, 7
    s_add_u32 {sT[0]}, {sT[0]}, {MU_OFF}
    s_waitcnt lgkmcnt(0)
    """)
    a.vm(f"buffer_store_dword v27, v26, {srd('WS')}, {sT[0]} offen sc1", "ust", cond=True)
    a("s_mov_b64 exec, -1\nL_a_nomu:")
    a.stamp("ust")
    pair_dma(16)

FM, UU, ACCB, XX = 96, 128, 32, 160
def window1(a):
    cfg = a.cfg
    a(f"""
    s_sub_u32 {sT1C}, 32, {sRB}
    s_cmp_eq_u32 {sRB}, 0
    s_cselect_b32 {sT1C}, 16, {sT1C}
    s_cmp_lt_u32 {sWID}, 2
    s_cselect_b32 {sT1C}, {sRB}, {sT1C}
    s_and_b32 {sT[0]}, {sWID}, 1
    s_lshl_b32 {sT[0]}, {sT[0]}, 10
    s_add_u32 {sT[0]}, {sT[0]}, {sT1C}
    v_and_b32 v3, 31, {vL}
    v_lshrrev_b32 v4, 5, {vL}
    v_lshl_add_u32 v5, v3, 5, {sT[0]}
    v_lshlrev_b32 v7, 10, v5
    v_lshl_add_u32 v7, v4, 4, v7
    s_lshl_b32 {sT[0]}, {sCB}, 6
    """)
    a.vm(f"buffer_load_dwordx4 {vr(XX)}, v7, {srd('X')}, {sT[0]} offen", "xres")
    a.vm(f"buffer_load_dwordx4 {vr(XX+4)}, v7, {srd('X')}, {sT[0]} offen offset:32", "xres")
    a(f"""
    s_cmp_gt_u32 {sT1C}, 16
    s_cselect_b32 {sT[1]}, 0x80000000, 0
    s_or_b32 {sT[1]}, {sT[1]}, {fl(1/2048)}
    v_cvt_f32_u32 v26, v5
    v_mul_f32 v26, {sT[1]}, v26
    v_lshlrev_b32 v27, 5, v4
    v_cvt_f32_u32 v27, v27
    v_mul_f32 v27, v26, v27
    """)
    def fm(lo, hi):
        for d in range(lo, hi):
            a(f"v_cos_f32 v28, v27\nv_sin_f32 v29, v27\nv_add_f32 v27, v27, v26\nv_cvt_pk_bf16_f32 v{FM+d}, v28, v29")
    nfm = cfg.get("fm_first", 20)
    fm(0, nfm)
    a(f"""
    s_lshl_b32 {sT[0]}, {sT[5]}, 10
    s_lshl_b32 {sT[1]}, {sXCD}, 7
    s_add_u32 {sT[0]}, {sT[0]}, {sT[1]}
    s_lshr_b32 {sT[1]}, {sS2}, 3
    s_lshl1_add_u32 {sT[1]}, {sT[1]}, {sQ}
    s_lshl2_add_u32 {sT[0]}, {sT[1]}, {sT[0]}
    s_add_u32 {sT[0]}, {sT[0]}, {F1_OFF}
    v_mov_b32 v30, {sTAG}
    v_lshlrev_b32 v31, 12, {vL}
    s_cmp_eq_u32 {sT[5]}, 4
    s_cselect_b32 {sT[1]}, 3, 1
    """)
    a.wait("ust")
    a(f"s_mov_b32 exec_lo, {sT[1]}\ns_mov_b32 exec_hi, 0")
    a.vm(f"buffer_store_dword v30, v31, {srd('WS')}, {sT[0]} offen sc1", "f1st")
    a("s_mov_b64 exec, -1")
    a.stamp("f1st")
    if cfg.get("clear_at") == "w1":
        clears(a)
    fm(nfm, 32)
    w1_addrs(a)
    a.wait("pair")
    a("s_barrier")
    dma_setup(a, 7, 0, 14, L_UQ)
    for ks in range(32):
        for b in range(2):
            d = 128 * b + 4 * ks
            a(f"ds_read_b64_tr_b16 {ar(d,2)}, v{12+b} offset:{1024*ks}\nds_read_b64_tr_b16 {ar(d+2,2)}, v{12+b} offset:{1024*ks+256}")
        if ks % 2:
            dma(a, vDQU, "WU", "quad", 8 * 3584)
            a("s_waitcnt lgkmcnt(6)")
    a("s_waitcnt lgkmcnt(0)\ns_barrier")
    a.stamp("B4")
    dma_setup(a, 7, 0, 14, 0)
    for i in range(cfg.get("gq_first", 16)):
        dma(a, vDQ, "WG", "quad", 8 * 3584)

def phase_b(a):
    cfg = a.cfg
    a(f"""
    s_cmp_gt_u32 {sT1C}, 16
    s_cselect_b32 {sT[2]}, {sRB}, {sT1C}
    s_cselect_b32 {sT[4]}, -1, 0
    v_and_b32 v16, 63, v5
    v_lshlrev_b32 v16, 7, v16
    v_lshrrev_b32 v26, 6, v5
    v_lshl_add_u32 v16, v26, 2, v16
    v_and_b32 v26, 0x13, v3
    v_and_b32 v27, 4, v3
    v_lshl_or_b32 v26, v27, 1, v26
    v_and_b32 v27, 8, v3
    v_lshrrev_b32 v27, 1, v27
    v_or_b32 v26, v26, v27
    s_lshl_b32 {sT[0]}, {sCB}, 5
    v_add_u32 v26, {sT[0]}, v26
    v_xor_b32 v26, {sT[4]}, v26
    v_subrev_u32 v26, {sT[4]}, v26
    v_and_b32 v17, 7, v26
    v_lshlrev_b32 v17, 2, v17
    v_bfe_u32 v27, v26, 3, 1
    v_lshl_add_u32 v17, v27, 10, v17
    v_bfe_u32 v27, v26, 4, 5
    v_lshl_add_u32 v17, v27, 5, v17
    v_lshl_add_u32 v17, v4, 16, v17
    v_add_u32 v18, 4096, v17
    v_and_b32 v26, 7, {vL}
    v_lshlrev_b32 v26, 7, v26
    v_and_b32 v27, 56, {vL}
    v_add_u32 v19, v26, v27
    s_lshr_b32 {sT[3]}, {sT[2]}, 1
    s_lshl_b32 {sT[3]}, {sT[3]}, 10
    s_add_u32 {sT[3]}, {sT[3]}, {F1_OFF}
    s_lshl_b32 {sT[2]}, {sT[2]}, 17
    s_mov_b32 {sT[5]}, {MU_OFF}
    """)
    a.wait("xres")
    for d in range(8):
        a(f"v_lshlrev_b32 v{ACCB+2*d}, 16, v{XX+d}\nv_and_b32 v{ACCB+2*d+1}, 0xffff0000, v{XX+d}")
    a.stamp("poll1")
    spin_flags(a, "p1", f"buffer_load_dwordx2 v[26:27], v19, {srd('WS')}, {sT[3]} offen sc1",
               f"v_xor_b32 v26, {sTAG}, v26\nv_xor_b32 v27, {sTAG}, v27\nv_or_b32 v26, v26, v27\nv_cmp_ne_u32 vcc, 0, v26")
    a.stamp("got1")
    a.vm(f"buffer_load_dword v28, v16, {srd('WS')}, {sT[5]} offen sc1", "mu")
    for kq in range(8):
        for dd in range(4):
            a.vm(f"buffer_load_dword v{UU+4*kq+dd}, v{17+dd//2}, {srd('WS')}, {sT[2]} offen offset:{2048*(dd&1)} sc1", f"u{kq}")
        if kq < 7: a(f"s_add_u32 {sT[2]}, {sT[2]}, 8192")
    a.wait("mu")
    for d in range(16):
        a(f"v_sub_f32 v{ACCB+d}, v{ACCB+d}, v28")
    a(f"""
    s_lshl_b32 {sT[0]}, {sR}, 4
    s_add_u32 {sT[0]}, {sT[0]}, {sCB}
    s_lshl_b32 {sT[1]}, {sT[0]}, 7
    s_add_u32 {sT[1]}, {sT[1]}, {SS_OFF}
    s_lshl_b32 {sT[0]}, {sT[0]}, 11
    s_add_u32 {sT[0]}, {sT[0]}, {HC_OFF}
    v_mov_b32 v26, 0
    v_lshlrev_b32 v16, 2, {vL}
    """)
    for kq in range(8):
        a.wait(f"u{kq}")
        a(f"{MF32} {vr(ACCB,16)}, {vr(UU+4*kq)}, {vr(FM+4*kq)}, {vr(ACCB,16)}")
    for ks in range(2):
        for d in range(4):
            a(f"v_cvt_pk_bf16_f32 v{48+4*ks+d}, v{ACCB+8*ks+2*d}, v{ACCB+8*ks+2*d+1}")
        a.vm(f"buffer_store_dwordx4 {vr(48+4*ks)}, {vL16}, {srd('WS')}, {sT[0]} offen offset:{1024*ks} sc1", "hst")
    for d in range(8):
        a(f"v_dot2c_f32_bf16 v26, v{48+d}, v{48+d}")
    a("v_mov_b32 v27, v26\nv_permlane32_swap_b32 v26, v27\nv_add_f32 v26, v26, v27\ns_mov_b32 exec_hi, 0")
    a.vm(f"buffer_store_dword v26, v16, {srd('WS')}, {sT[1]} offen sc1", "hst")
    a("s_mov_b64 exec, -1")
    a.stamp("hst")
    for i in range(cfg.get("gq_first", 16), 16):
        dma(a, vDQ, "WG", "quad", 8 * 3584)

HA = 128
class Single:
    def __init__(self, a): self.a, self.n = a, 0
    def __call__(self):
        a, i = self.a, self.n
        mat, v, base = (("WG", vDS, L_S), ("WU", vDSU, L_S + 16384))[i // 4]
        if i % 4 == 0: dma_setup(a, 5, 3072, 12, base)
        dma(a, v, mat, "single", 32 * 3584)
        self.n += 1

def epi_block(a, acc, dst, gs, off):
    o = []
    for j in range(0, 8, 2):
        t0, t1 = 26, 27
        g0, g1, u0, u1 = acc + j, acc + j + 1, acc + 8 + j, acc + 9 + j
        o += [(1, f"v_mul_f32 v{t0}, v16, v{g0}"), (1, f"v_mul_f32 v{t1}, v16, v{g1}"),
              (2, f"v_exp_f32 v{t0}, v{t0}"), (2, f"v_exp_f32 v{t1}, v{t1}"),
              (1, f"v_mul_f32 v{u0}, v{g0}, v{u0}"),
              (1, f"v_fma_f32 v{t0}, v{t0}, v17, v17"), (1, f"v_fma_f32 v{t1}, v{t1}, v17, v17"),
              (2, f"v_rcp_f32 v{t0}, v{t0}"), (2, f"v_rcp_f32 v{t1}, v{t1}"),
              (1, f"v_mul_f32 v{u1}, v{g1}, v{u1}"),
              (1, f"v_mul_f32 v{u0}, v{u0}, v{t0}"), (1, f"v_mul_f32 v{u1}, v{u1}, v{t1}"),
              (1, f"v_cvt_pk_bf16_f32 v{dst + j//2}, v{u0}, v{u1}")]
    o.append((1, lambda: a.vm(f"buffer_store_dwordx4 {vr(dst)}, {vL16}, {srd('WS')}, {gs} offen offset:{off} sc1", "gst")))
    return o

def checked(a, name, loads, regs):
    a.wait(name)
    chk = []
    rs = list(regs)
    chk.append(f"v_max3_u32 v28, v{rs[0]}, v{rs[1]}, v{rs[2]}")
    for i in range(3, len(rs), 2):
        chk.append(f"v_max3_u32 v28, v28, v{rs[i]}, v{rs[min(i+1, len(rs)-1)]}")
    chk.append("v_cmp_eq_u32 vcc, -1, v28")
    a("\n".join(chk))
    a(f"s_cbranch_vccnz L_{name}_slow\nL_{name}_ok:")
    t = [f"L_{name}_slow:", f"s_mov_b32 {sT[8]}, 0", f"L_{name}_lp:", "s_nop 15"] + loads
    t += [f"s_add_u32 {sT[8]}, {sT[8]}, 1", f"s_cmp_gt_u32 {sT[8]}, {SPIN}", "s_waitcnt vmcnt(0)", f"s_cbranch_scc1 L_{name}_ok"]
    t += chk + [f"s_cbranch_vccnz L_{name}_lp", f"s_branch L_{name}_ok"]
    a.tail.append("\n".join(t))

def ffn(a):
    cfg = a.cfg
    single = Single(a)
    sHC, sWD = sT[6], sT[7]
    a(f"""
    s_lshl_b32 {sT[0]}, {sR}, 9
    s_add_u32 {sT[3]}, {sT[0]}, {F2_OFF}
    s_lshr_b32 {sT[1]}, {sCB}, 2
    s_lshl_b32 {sT[1]}, {sT[1]}, 7
    s_and_b32 {sT[2]}, {sCB}, 3
    s_lshl2_add_u32 {sT[1]}, {sT[2]}, {sT[1]}
    s_add_u32 {sT[0]}, {sT[3]}, {sT[1]}
    v_mov_b32 v30, {sTAG}
    v_mov_b32 v31, 0
    v_bfe_u32 v19, {vL}, 2, 2
    v_lshlrev_b32 v19, 7, v19
    v_and_b32 v26, 3, {vL}
    v_lshl_add_u32 v19, v26, 2, v19
    s_lshl_b32 {sHC}, {sR}, 15
    s_add_u32 {sHC}, {sHC}, {HC_OFF}
    """)
    for _ in range(cfg.get("s_pre", 1)): single()
    a.wait("hst", "clr")
    a("s_mov_b64 exec, 1")
    a.vm(f"buffer_store_dword v30, v31, {srd('WS')}, {sT[0]} offen sc1", "f2st")
    a("s_mov_b64 exec, -1")
    a.stamp("f2st")
    for _ in range(cfg.get("s_post", 2)): single()
    a.wait("quad")
    a("s_barrier")
    spin_flags(a, "p2", f"buffer_load_dword v26, v19, {srd('WS')}, {sT[3]} offen sc1", f"v_cmp_ne_u32 vcc, {sTAG}, v26")
    a.stamp("got2")
    nA = [0]
    def a_load():
        ks = nA[0]
        a.vm(f"buffer_load_dwordx4 {vr(HA+4*ks)}, {vL16}, {srd('WS')}, {sHC} offen offset:{1024*(ks%4)} sc1", f"a{ks}")
        if ks % 4 == 3: a(f"s_add_u32 {sHC}, {sHC}, 4096")
        nA[0] += 1
    APD = cfg.get("apd", 8)
    for _ in range(APD): a_load()
    a(f"s_or_b32 {sT[0]}, s2, {sWID}\ns_cbranch_scc1 L_noep\ns_mov_b32 {sT[0]}, {EP_OFF}\ns_mov_b64 exec, 1")
    a.vm(f"buffer_store_dword v30, v31, {srd('WS')}, {sT[0]} offen sc1", "ep", cond=True)
    a("s_mov_b64 exec, -1\nL_noep:")

    ACC = {0: 32, 1: 48, 2: 64, 3: 80, "X": 96, "Y": 32, "Z": 48}
    OWN = {0: 112, 1: 116, 2: 120, 3: 124, "X": 22, "Y": 32, "Z": 48}
    GST = {0: (sGQ, 0), 1: (sGQ, 1), 2: (sGQ, 2), 3: (sGQ, 3), "X": (sGP, 0), "Y": (sGP, 1), "Z": (sGS, 0)}
    BLK = [0, 1, 2, 3, "X", "Y", "Z"]
    GF = {(b, sg): HA + 12 * bi + 4 * (sg - 1) for bi, b in enumerate(BLK) for sg in (1, 2, 3)}
    for b in BLK: GF[(b, 0)] = OWN[b]
    ACC2 = {1: 64, 2: 80, 3: 96, 0: 224}
    RQ2 = [12, 13, 18, 19]
    vDW, SEL, HR, PF = "v21", 240, 248, [36, 40, 44, 52, 56, 60]
    sWDb = [sT[1], sT[2], sT[3], sT[4]]
    seq = []
    for ks in range(32):
        for b in range(4):
            seq.append(dict(acc=ACC[b], rd=(vRQ[b], 2048 * ks, vRQ[b], 2048 * ks + 512), b=HA + 4 * ks, first=ks == 0,
                            vw=f"a{ks}" if b == 0 else None))
    for bi, b in enumerate("XY"):
        for ks in range(32):
            seq.append(dict(acc=ACC[b], w=ar(128 * bi + 4 * ks), b=HA + 4 * ks, first=ks == 0))
    for ks in range(32):
        seq.append(dict(acc=ACC["Z"], rd=(vRS[0], 512 * ks, vRS[1], 512 * ks), b=HA + 4 * ks, first=ks == 0))
    seq[160]["mark"] = ["e0"]; seq[192]["mark"] = ["e1"]
    N1 = len(seq)
    order = ([(b, 0) for b in (0, 1, 2, 3)] + [(b, sg) for b in (0, 1, 2, 3) for sg in (1, 2, 3)]
             + [(b, sg) for b in "XYZ" for sg in (0, 1, 2, 3)])
    def wd_rd(p, s):
        return (RQ2[s], 4096 * (p % 14), RQ2[s], 4096 * (p % 14) + 1024)
    for p, k in enumerate(order):
        for s in (1, 2, 3):
            e = dict(acc=ACC2[s], rd=wd_rd(p, s), b=GF[k], first=p == 0, bump=p == 14)
            if s == 1 and k[1] == 1: e["chk"] = k[0]
            if s == 1 and k[1] == 0: e["mark"] = [f"e{k[0]}"]
            if p == 0: e["mark"] = e.get("mark", []) + [{1: "e2", 2: "e3", 3: "eX"}[s]]
            seq.append(e)
    NF = len(seq)
    for p, k in enumerate(order):
        seq.append(dict(acc=ACC2[0], rd=wd_rd(p, 0), b=GF[k], first=False, bump=p == 14))
    seq[NF]["mark"] = ["init0"]
    PD = 5
    lds_idx = [i for i, e in enumerate(seq) if "rd" in e]
    for n, i in enumerate(lds_idx):
        seq[i]["ln"] = n
        seq[i]["w"] = vr(96 + 4 * (n % 6)) if i < 128 else ar(4 * (n % 8))
        seq[i]["dst"] = ("v", 96 + 4 * (n % 6)) if i < 128 else ("a", 4 * (n % 8))
    issued = [0]
    def issue_reads(i):
        while issued[0] < len(lds_idx) and lds_idx[issued[0]] <= i + PD:
            e = seq[lds_idx[issued[0]]]
            p, d = e["dst"]; v0, o0, v1, o1 = e["rd"]
            if e.get("bump"): a(f"v_add_u32 v{v0}, {14*4096}, v{v0}")
            a(f"ds_read_b64_tr_b16 {vr(d,2,p)}, v{v0} offset:{o0}\nds_read_b64_tr_b16 {vr(d+2,2,p)}, v{v1} offset:{o1}")
            issued[0] += 1
    fill, at, done, cur = [], {}, set(), [0]
    def when(i, fn): at.setdefault(i, []).append(fn)
    def lines(txt): return [(1, l.strip()) for l in txt.strip().split("\n")]
    def mark(m): return [(0, lambda: done.add(m))]
    def pop():
        c, it = fill.pop(0)
        it() if callable(it) else a(it)
    nwd = [0]
    def wd_dma():
        b, sg = order[nwd[0]]
        s, off = GST[b]
        a(f"s_lshl4_add_u32 {sSO}, {s[sg]}, {sWDb[off]}")
        a.vm(f"buffer_load_dwordx4 {vDW}, {srd('WD')}, {sSO} offen lds", "wd0" if nwd[0] < 14 else "wd1")
        a("s_add_u32 m0, m0, 4096")
        nwd[0] += 1
    def g_lines(b):
        s, off = GST[b]
        return [f"buffer_load_dwordx4 {vr(GF[(b,sg)])}, {vL16}, {srd('WS')}, {s[sg]} offen offset:{1024*off} sc1" for sg in (1, 2, 3)]
    gl_done = set()
    def g_load(b):
        if b not in gl_done:
            gl_done.add(b)
            for l in g_lines(b): a.vm(l, f"g{b}")
    D1 = cfg.get("d1", 22)
    def epi(b):
        s, off = GST[b]
        return (epi_block(a, ACC[b], OWN[b], s[0], 1024 * off) + mark(f"e{b}")
                + [(0, lambda: when(max(cur[0] + D1, 195 + 3 * BLK.index(b)), lambda: g_load(b)))])
    for ks in range(APD, 32):
        when(4 * (ks - APD) + 1, a_load)
    def ss_loads():
        a(f"s_lshl_b32 {sT[0]}, {sR}, 11\ns_add_u32 {sT[0]}, {sT[0]}, {SS_OFF}\nv_lshlrev_b32 v16, 2, v3\nv_lshl_add_u32 v16, v4, 10, v16")
        fill.extend([(1, (lambda c=c: a.vm(f"buffer_load_dword v{120+c}, v16, {srd('WS')}, {sT[0]} offen offset:{128*c} sc1", "ss"))) for c in range(8)])
    when(4 * (32 - APD) - 2, ss_loads)
    for i in range(single.n, 8):
        when(4 * (32 - APD) + 4 + 9 * (i - single.n), single)
    last_single = 4 * (32 - APD) + 4 + 9 * (7 - single.n)
    fill.extend(lines(f"""
        v_lshrrev_b32 v26, 4, {vL}
        v_and_b32 v27, 15, {vL}
        v_lshlrev_b32 v28, 2, v26
        v_xor_b32 v27, v27, v28
        v_lshlrev_b32 v27, 4, v27
        v_lshl_add_u32 {vDW}, v26, 10, v27
        s_mul_i32 {sT[0]}, {sR}, {GR}
        s_add_u32 {sT[0]}, {sT[0]}, {G_OFF}
        s_lshl_b32 {sT[0]}, {sT[0]}, 4
        s_lshl_b32 {sWDb[0]}, {sWID}, 12
        s_sub_u32 {sWDb[0]}, {sWDb[0]}, {sT[0]}
        s_and_b32 {sT[0]}, {sCB}, 3
        s_lshl_b32 {sT[0]}, {sT[0]}, 8
        s_add_u32 {sWDb[0]}, {sWDb[0]}, {sT[0]}
        s_add_u32 {sWDb[1]}, {sWDb[0]}, 16384
        s_add_u32 {sWDb[2]}, {sWDb[0]}, 32768
        s_add_u32 {sWDb[3]}, {sWDb[0]}, 49152
        v_bfe_u32 v26, {vL}, 2, 2
        v_lshlrev_b32 v12, 6, v26
        v_lshl_add_u32 v26, v4, 3, v26
        v_lshl_add_u32 v12, v26, 8, v12
        v_and_b32 v27, 24, v14
        v_and_b32 v28, 16, {vL}
        v_lshl_add_u32 v27, v28, 1, v27
        v_add_u32 v12, v12, v27
        s_lshr_b32 {sT[0]}, {sCB}, 2
        s_lshl_b32 {sT[0]}, {sT[0]}, 6
        v_xor_b32 v12, {sT[0]}, v12
        v_xor_b32 v13, 64, v12
        v_xor_b32 v18, 128, v12
        v_xor_b32 v19, 192, v12
        """))
    def stats():
        fill.insert(0, (1, lambda: a.wait("ss")))
        fill[1:1] = lines(f"""
        v_add_f32 v120, v120, v121
        v_add_f32 v122, v122, v123
        v_add_f32 v124, v124, v125
        v_add_f32 v126, v126, v127
        v_add_f32 v120, v120, v122
        v_add_f32 v124, v124, v126
        v_add_f32 v16, v120, v124
        v_mov_b32 v17, v16
        v_mov_b32 v26, {fl(1e-5)}
        v_permlane32_swap_b32 v16, v17
        v_add_f32 v16, v16, v17
        v_fmamk_f32 v17, v16, {fl(1/512)}, v26
        v_rsq_f32 v16, v17
        v_mul_f32 v16, {fl(-1.4426950408889634)}, v16
        """)
    when(121, stats)
    def after_quad():
        a.stamp("quad")
        a("s_barrier")
        for b in range(4): fill.extend(epi(b))
    when(127, after_quad)
    wd_start = max(cfg.get("wd_start", 130), last_single + 2)
    when(wd_start - 1, lambda: a(f"s_lshl_b32 m0, {sWID}, 10"))
    for i in range(28):
        when(wd_start + cfg.get("wd_gap", 3) * i, wd_dma)
    when(192 - PD - 1, lambda: (a.wait("single"), a("s_barrier")))
    when(N1 - PD - 1, lambda: (a.wait("wd0"), a("s_barrier")))
    when(N1 + 42 - PD - 1, lambda: (a.wait("wd1"), a("s_barrier")))
    assert wd_start + cfg.get("wd_gap", 3) * 13 < N1 - PD - 1 and wd_start + cfg.get("wd_gap", 3) * 27 < N1 + 42 - PD - 1
    when(160, lambda: fill.extend(epi("X")))
    when(192, lambda: fill.extend(epi("Y")))
    sOC = sT[5]
    def after_g1():
        a.stamp("g1end")
        fill.extend(epi("Z"))
        fill.extend(lines(f"""
        s_and_b32 {sT[0]}, {sCB}, 3
        s_lshr_b32 {sOC}, {sCB}, 2
        s_lshl2_add_u32 {sOC}, {sT[0]}, {sOC}
        s_lshl_b32 {sT[0]}, {sOC}, 11
        s_sub_u32 {sHC}, {sHC}, 32768
        s_add_u32 {sT[0]}, {sT[0]}, {sHC}
        v_lshlrev_b32 v5, 10, v5
        v_lshlrev_b32 v6, 4, v3
        """))
        fill.extend([(1, lambda: a.vm(f"buffer_load_ushort v212, v5, {srd('X')}, 0 offen", "res")),
                     (1, lambda: a.vm(f"buffer_load_ushort v213, v6, {srd('WS')}, {sHC} offen sc1", "res")),
                     (1, lambda: a.vm(f"buffer_load_dwordx4 {vr(HR)}, {vL16}, {srd('WS')}, {sT[0]} offen sc1", "res")),
                     (1, lambda: a.vm(f"buffer_load_dwordx4 {vr(HR+4)}, {vL16}, {srd('WS')}, {sT[0]} offen offset:1024 sc1", "res"))])
        sel = f"""
        s_lshl_b32 {sOC}, {sOC}, 6
        v_bfe_u32 v26, {vL}, 2, 1
        v_cmp_eq_u32 vcc, v26, v4
        v_and_b32 v26, 1, {vL}
        v_lshlrev_b32 v26, 4, v26
        v_lshlrev_b32 v26, v26, 0x3f80
        v_cndmask_b32 v26, 0, v26, vcc
        v_bfe_u32 v27, {vL}, 1, 1
        v_bfe_u32 v29, {vL}, 3, 2
        v_lshl_or_b32 v27, v29, 1, v27
        """.replace("v_lshlrev_b32 v26, v26, 0x3f80", "v_mov_b32 v27, 0x3f80\nv_lshlrev_b32 v26, v26, v27")
        grp = lines(sel)
        for d in range(8):
            grp += lines(f"v_cmp_eq_u32 s[30:31], {d}, v27\nv_cndmask_b32 v{SEL+d}, 0, v26, s[30:31]")
        fill.append((3, lambda: [a(l) for _, l in grp[1:4 + 4]]))
        fill.extend(grp[:1] + grp[8:])
    when(N1, after_g1)
    def init0():
        fill.append((1, lambda: a.wait("res")))
        fill.extend(lines("v_lshlrev_b32 v212, 16, v212\nv_lshlrev_b32 v213, 16, v213\nv_sub_f32 v224, v212, v213"))
        fill.extend(lines("\n".join(f"v_mov_b32 v{224+d}, v224" for d in range(1, 16))))
        fill.extend(mark("init0"))
    when(NF - 14, init0)
    def send():
        a.stamp("fend")
        for s in (1, 2, 3):
            fill.extend(lines(f"s_xor_b32 {sT[0]}, {sCB}, {4*s}\ns_sub_i32 {sT[0]}, {sT[0]}, {sCB}\ns_mul_i32 {sT[0]}, {sT[0]}, 6144\n"
                              f"s_add_u32 {sT[0]}, {sT[0]}, {sPIN}\ns_add_u32 {sT[0]}, {sT[0]}, {2048*(s-1)}"))
            c = ACC2[s]
            for ks in range(2):
                fill.extend(lines("\n".join(f"v_cvt_pk_bf16_f32 v{c+8*ks+d}, v{c+8*ks+2*d}, v{c+8*ks+2*d+1}" for d in range(4))))
                fill.append((1, lambda c=c, ks=ks: a.vm(f"buffer_store_dwordx4 {vr(c+8*ks)}, {vL16}, {srd('WS')}, {sT[0]} offen offset:{1024*ks} sc1", "pst")))
    when(NF, send)

    CAP = cfg.get("cap", 6)
    issue_reads(-1)
    waited = -1
    for i, e in enumerate(seq):
        cur[0] = i
        for m in e.get("mark", []):
            while m not in done: pop()
        if "chk" in e:
            b = e["chk"]
            g_load(b)
            checked(a, f"g{b}", g_lines(b), [GF[(b, sg)] for sg in (1, 2, 3)])
        if e.get("vw"): a.wait(e["vw"])
        if "ln" in e and e["ln"] > waited:
            waited = min(e["ln"] + 1, issued[0] - 1)
            a(f"s_waitcnt lgkmcnt({2*(issued[0]-1-waited)})")
        c = vr(e["acc"], 16)
        a(f"{MF32} {c}, {e['w']}, {vr(e['b'])}, {0 if e['first'] else c}")
        for fn in at.pop(i, []): fn()
        issue_reads(i)
        nxt = seq[i + 1] if i + 1 < len(seq) else {}
        reserve = (1 if nxt.get("ln", -1) > waited else 0) + (1 if nxt.get("vw") else 0)
        while fill and a.slots + fill[0][0] + reserve <= CAP: pop()
    while fill: pop()
    assert not at, at.keys()
    a.stamp("mend")
    own = vr(ACC2[0], 16)
    a(f"s_add_u32 {sT[0]}, {sPIN}, 4096")
    for ks in range(2):
        a(f"{MF32} {own}, {vr(SEL+4*ks)}, {vr(HR+4*ks)}, {own}")
    if cfg.get("p_wait", 1): a.wait("pst")
    pl = [f"buffer_load_dwordx4 {vr(PF[i])}, {vL16}, {srd('WS')}, {sPIN if i < 4 else sT[0]} offen offset:{1024*(i%4)} sc1" for i in range(6)]
    for l in pl: a.vm(l, "pp")
    a(f"v_lshl_add_u32 v5, v4, 4, v5")
    checked(a, "pp", pl, PF)
    a.stamp("pgot")
    for i in range(6):
        a(f"{MF32} {own}, {vr(SEL+4*(i&1))}, {vr(PF[i])}, {own}")
    for ks in range(2):
        for d in range(4):
            a(f"v_cvt_pk_bf16_f32 v{64+4*ks+d}, v{224+8*ks+2*d}, v{224+8*ks+2*d+1}")
        a.vm(f"buffer_store_dwordx4 {vr(64+4*ks)}, v5, {srd('OUT')}, {sOC} offen offset:{32*ks}{cfg.get('oflag', '')}", "ost")

def stamp_out(a):
    a("s_waitcnt vmcnt(0)")
    a.stamp("end")
    a("s_waitcnt lgkmcnt(0)")
    for i in range(16):
        a(f"v_mov_b32 v{4+i}, {f's{68+2*i}' if i < a.nst else 0}")
    a(f"""
    s_lshl2_add_u32 {sT[0]}, s2, {sWID}
    s_lshl_b32 {sT[0]}, {sT[0]}, 6
    s_add_u32 {sT[0]}, {sT[0]}, {STAMP_OFF}
    v_mov_b32 v3, 0
    s_mov_b64 exec, 1
    """)
    for q in range(4):
        a(f"buffer_store_dwordx4 {vr(4+4*q)}, v3, {srd('WS')}, {sT[0]} offen offset:{16*q}")

def build(cfg):
    a = K(cfg)
    prologue(a); phase_a(a); window1(a); phase_b(a); ffn(a)
    if cfg.get("stamps"): stamp_out(a)
    a("L_end:\ns_endpgm")
    for t in a.tail: a(t)
    lines, added = hazard.fix(a.lines)
    print(f"{len(lines)} lines, {added} wait states added; stamps: {cfg.get('names')}", file=sys.stderr)
    head = open(f"cdna_kernels/{NAME}.s.ref").read().split("; Override launch")[0]
    kn = NAME + "_kernel"
    if cfg.get("aslist"):
        head += f"; @launch kernel={kn} grid=(256,1,1) block=(256,1,1) lds=163840\n"
    else:
        head += "; @launch grid=(256,1,1) block=(256,1,1) lds=163840\n"
    return head + HEAD + kernel_open(kn) + "\n".join(lines) + '\n.section .rodata,"a"\n' + descriptor(kn, 512, 102, 256)

if __name__ == "__main__":
    cfg = {}
    for kv in sys.argv[2:]:
        k, v = kv.split("=")
        cfg[k] = int(v) if v.lstrip("-").isdigit() else v
    skip = set(str(cfg.get("nostamp", "")).split(","))
    old = K.stamp
    K.stamp = lambda self, n: None if n in skip else old(self, n)
    open(sys.argv[1], "w").write(build(cfg))
```

```python
import struct, sys
from asmlib import *
import hazard

NAME = "sequential_preLN__spectral_fnet__swiglu_ffn__prompt"
U_OFF, MU_OFF, SS_OFF, F1_OFF, F2_OFF, EP_OFF = 0, 0x240000, 0x244000, 0x268000, 0x270000, 0x27F000
HC_OFF, G_OFF, STAMP_OFF, P_OFF, WS_BYTES = 0x280000, 0x480000, 0xBC0000, 0xC00000, 0x1200000
GR = 112 * 1024
SPIN = 4000

SRD = dict(X=4, WS=8, WG=12, WU=16, WD=20, OUT=24, TMP=28)
KOFF = dict(X=0, WG=48, WU=56, WD=64, OUT=72, WS=88)
SIZE = dict(X=2097152, WG=1835008, WU=1835008, WD=1835008, OUT=2097152, WS=WS_BYTES, TMP=1835008)
srd = lambda n: f"s[{SRD[n]}:{SRD[n]+3}]"
fl = lambda x: hex(struct.unpack("<I", struct.pack("<f", x))[0])
vr = lambda b, n=4, p="v": f"{p}[{b}:{b+n-1}]"
ar = lambda b, n=4: vr(b, n, "a")
MF16, MF32 = "v_mfma_f32_16x16x32_bf16", "v_mfma_f32_32x32x16_bf16"

sWID, sXCD, sJ, sRB, sCB, sTAG, sR = "s32", "s33", "s34", "s35", "s36", "s37", "s38"
sT = [f"s{39+i}" for i in range(9)]
sGQ = [f"s{48+i}" for i in range(4)]
sGP = [f"s{52+i}" for i in range(4)]
sGS = [f"s{56+i}" for i in range(4)]
sS2, sQ, sP, sWROW, sT1C, sPIN, sM0, sSO = "s60", "s61", "s62", "s63", "s64", "s65", "s66", "s67"
sPIN2, sWRM = "s3", "s101"
vL, vL16 = "v1", "v2"
NEG = 252
L_H1, L_S = 65536, 131072
XP = 1040
LX = 163840 - 50176
LST = LX + 32 * XP
LH = LST + 512

VOP3 = ("v_fma_", "v_cvt_pk", "v_max3", "v_lshl_add", "v_lshl_or", "v_add3", "v_bfe", "v_alignbit", "v_fmamk", "v_perm_b32")
def cost(t):
    if t.endswith(":"): return 0
    if t.startswith(hazard.TRANS): return 8
    if t.startswith("buffer_store_dwordx4"): return 20
    if t.startswith(VOP3) or (t.startswith("v_") and ("0x" in t or "s[" in t)): return 5
    return 4

class K(Asm):
    def __init__(self, cfg):
        super().__init__()
        self.cfg = cfg
        self.vmlog = []
        self.nst = 0
        self.tail = []
        self.slots = 0
    def __call__(self, s=""):
        n = len(self.lines)
        super().__call__(s)
        for l in self.lines[n:]:
            t = l.strip()
            if t.startswith("v_mfma"): self.slots = 0
            else: self.slots += cost(t)
    def vm(self, ins, tag, cond=False):
        self(ins)
        self.vmlog.append((tag, cond))
    def wait(self, *tags):
        last = max(i for i, (t, _) in enumerate(self.vmlog) if t in tags)
        n = sum(1 for (t, c) in self.vmlog[last + 1:] if not c)
        assert n < 64
        self(f"s_waitcnt vmcnt({n})")
    def stamp(self, name):
        only = self.cfg.get("only")
        if only and name not in ["start", "end"] + str(only).split(","): return
        if not only and (name[0] == "_" or name[0] == "m" and name[1:].isdigit()): return
        if self.cfg.get("stamps") and name not in str(self.cfg.get("nostamp", "")).split(","):
            self(f"{'s_memtime' if self.cfg.get('cyc') else 's_memrealtime'} s[{68+2*self.nst}:{69+2*self.nst}]")
            self.cfg.setdefault("names", []).append(name)
            self.nst += 1
            assert self.nst <= 15

def dma(a, voff, mat, tag, step_src):
    a.vm(f"buffer_load_dwordx4 {voff}, {srd(mat)}, {sSO} offen lds", tag)
    a(f"s_add_u32 m0, m0, 1024\ns_add_u32 {sSO}, {sSO}, {step_src}")

def dma_setup(a, rows, colshift, colbase, ldsshift, ldsbase):
    a(f"""
    s_lshl_b32 {sM0}, {sWID}, {ldsshift}
    s_add_u32 m0, {sM0}, {ldsbase}
    s_lshl_b32 {sSO}, {sCB}, {colshift}
    {f"s_lshl1_add_u32 {sSO}, {sWROW}, {sSO}" if rows == 128 else f"s_add_u32 {sSO}, {sSO}, {sWROW}"}
    s_add_u32 {sSO}, {sSO}, {colbase}
    """)

vDQ, vDQU, vDP, vDPU, vDS, vDSU = "v20", "v21", "v22", "v23", "v24", "v25"
vRQ = [8, 9, 10, 11]
vRS = [14, 15]

def spin_flags(a, name, ld, cmp_lines):
    a(f"s_mov_b32 {sT[8]}, 0\nL_{name}:")
    a.vm(ld, name)
    a(f"s_add_u32 {sT[8]}, {sT[8]}, 1\ns_cmp_gt_u32 {sT[8]}, {SPIN}\ns_waitcnt vmcnt(0)\ns_cbranch_scc1 L_{name}_ok")
    a(cmp_lines)
    a(f"s_cbranch_vccnz L_{name}\nL_{name}_ok:")

class Clears:
    def __init__(self, a):
        self.a = a
        self.q = [(sPIN, 1024 * i) for i in range(4)] + [(sPIN2, 0), (sPIN2, 1024), (sGS[0], 0), (sGP[0], 1024), (sGP[0], 0)]
        self.q += [(sGQ[0], 1024 * i) for i in (3, 2, 1, 0)]
        self.plan = dict(kv.split(":") for kv in str(a.cfg.get("clr", "w1:5,b1:6,b2:2")).split(","))
    def __call__(self, site):
        for _ in range(int(self.plan.get(site, 0))):
            s, off = self.q.pop(0)
            self.a.vm(f"buffer_store_dwordx4 {vr(NEG)}, {vL16}, {srd('WS')}, {s} offen offset:{off} sc1", "clr")

def warm(a, site):
    plan = dict(kv.split(":") for kv in str(a.cfg.get("warm", "p:x7,q:x7,s:w1,d:w1")).split(","))
    for what, at in plan.items():
        if at != site: continue
        if what in "pqs":
            lg, base, mul = {"q": (2, 0, 512), "p": (1, 2048, 256), "s": (0, 3072, 128)}[what]
            a(f"""
            s_lshr_b32 {sM0}, {sXCD}, 1
            s_mul_i32 {sM0}, {sM0}, {mul}
            s_add_u32 {sM0}, {sM0}, {sWRM}
            v_lshrrev_b32 v30, {lg}, {vL}
            v_mul_u32_u24 v30, 3584, v30
            v_and_b32 v31, {(1 << lg) - 1}, {vL}
            v_lshl_add_u32 v30, v31, 7, v30
            s_mov_b64 exec, {hex((1 << (8 << lg)) - 1)}
            """.replace("s_mov_b64 exec, 0xffffffff", "s_mov_b32 exec_hi, 0"))
            a.vm(f"buffer_load_dword v0, v30, {srd('TMP')}, {sM0} offen offset:{base}", "warm")
            a("s_mov_b64 exec, -1")
        else:
            a(f"""
            s_lshl2_add_u32 {sT[0]}, {sJ}, {sWID}
            s_cmp_lt_u32 {sT[0]}, 96
            s_cselect_b32 {sT[2]}, 2, 3
            s_cselect_b32 {sT[3]}, 32, 16
            s_cmp_lt_u32 {sT[0]}, 64
            s_cselect_b32 {sT[2]}, 0, {sT[2]}
            s_cselect_b32 {sT[3]}, 64, {sT[3]}
            s_lshr_b32 {sT[1]}, {sXCD}, 1
            s_mul_i32 {sT[1]}, {sT[1]}, {sT[3]}
            s_mul_i32 {sT[2]}, {sT[2]}, 96
            s_add_u32 {sT[1]}, {sT[1]}, {sT[2]}
            s_add_u32 {sT[1]}, {sT[1]}, {sT[0]}
            s_cmp_lt_u32 {sT[0]}, 112
            s_cselect_b32 {sT[1]}, {sT[1]}, 0x1000
            s_lshl_b32 {sT[1]}, {sT[1]}, 12
            v_lshlrev_b32 v30, 7, {vL}
            s_mov_b32 exec_hi, 0
            """)
            a.vm(f"buffer_load_dword v0, v30, {srd('WD')}, {sT[1]} offen", "warm")
            a("s_mov_b64 exec, -1")

def prologue(a):
    cfg = a.cfg
    a.stamp("start")
    if cfg.get("stamps"): a("s_mov_b32 s100, 0")
    a("s_cmp_ge_u32 s2, 256\ns_cbranch_scc1 L_end")
    for n in ("X", "WS", "WG", "WU", "WD", "OUT"):
        a(f"s_load_dwordx2 s[{SRD[n]}:{SRD[n]+1}], s[0:1], {KOFF[n]}")
    a(f"v_lshrrev_b32 v2, 6, v0\nv_and_b32 {vL}, 63, v0\nv_readfirstlane_b32 {sWID}, v2")
    for n in SRD:
        a(f"s_mov_b32 s{SRD[n]+2}, {SIZE[n]}\ns_mov_b32 s{SRD[n]+3}, 0x20000")
    a(f"""
    s_and_b32 {sXCD}, s2, 7
    s_lshr_b32 {sJ}, s2, 3
    s_lshr_b32 {sS2}, {sJ}, 2
    s_lshl_b32 {sS2}, {sS2}, 3
    s_or_b32 {sS2}, {sS2}, {sXCD}
    s_lshl_b32 {sT[0]}, {sWID}, 19
    s_lshl_b32 {sT[1]}, {sS2}, 10
    s_add_u32 {sT[0]}, {sT[0]}, {sT[1]}
    s_add_u32 {sT[1]}, {sT[0]}, 0x40000
    v_lshlrev_b32 {vL16}, 4, {vL}
    v_and_b32 v3, 15, {vL}
    v_lshrrev_b32 v4, 4, {vL}
    v_and_b32 v5, 3, {vL}
    v_lshl_add_u32 v5, v4, 2, v5
    v_lshlrev_b32 v5, 4, v5
    v_lshrrev_b32 v6, 2, v3
    v_lshl_add_u32 v7, v6, 16, v5
    s_and_b32 {sQ}, {sJ}, 1
    s_bfe_u32 {sP}, {sJ}, 0x10001
    """)
    if cfg.get("cpf", 1):
        a(f"""
        s_getpc_b64 s[28:29]
        L_pc:
        s_lshl2_add_u32 {sT[2]}, {sJ}, {sWID}
        s_lshl_b32 {sT[2]}, {sT[2]}, 8
        v_lshl_add_u32 v8, {vL}, 7, {sT[2]}
        v_min_u32 v8, L_last-L_pc, v8
        v_mov_b32 v9, s29
        v_add_co_u32 v8, vcc, s28, v8
        v_addc_co_u32 v9, vcc, 0, v9, vcc
        s_mov_b64 exec, 3
        """)
        a.vm("global_load_dword v0, v[8:9], off", "warm")
        a("s_mov_b64 exec, -1")
    a("s_waitcnt lgkmcnt(0)")
    X = 64
    a.stamp("_ka")
    for i in range(8):
        a.vm(f"buffer_load_dwordx4 {vr(X+4*i)}, v7, {srd('X')}, {sT[i//4]} offen offset:{256*(i%4)}", f"x{i}")
    a(f"""
    s_add_u32 s44, s8, {EP_OFF}
    s_addc_u32 s45, s9, 0
    s_load_dword {sTAG}, s[44:45], 0
    s_and_b32 {sRB}, {sXCD}, 1
    s_lshl_b32 {sRB}, {sRB}, 3
    s_and_b32 {sT[0]}, {sJ}, 7
    s_or_b32 {sRB}, {sRB}, {sT[0]}
    s_lshr_b32 {sCB}, {sXCD}, 1
    s_lshl_b32 {sCB}, {sCB}, 2
    s_lshr_b32 {sT[0]}, {sJ}, 3
    s_or_b32 {sCB}, {sCB}, {sT[0]}
    s_lshl_b32 {sR}, {sRB}, 2
    s_add_u32 {sR}, {sR}, {sWID}
    s_mul_i32 {sWROW}, {sWID}, {64*3584}
    """)
    a.stamp("_xi")

def late_setup(a):
    cfg = a.cfg
    a(f"""
    s_bitcmp1_b32 {sWID}, 0
    s_cselect_b32 s28, s16, s12
    s_cselect_b32 s29, s17, s13
    s_lshr_b32 {sT[1]}, {sWID}, 1
    s_lshl1_add_u32 {sWRM}, {sJ}, {sT[1]}
    s_mul_i32 {sWRM}, {sWRM}, {8*3584}
    """)
    for d in range(4): a(f"v_mov_b32 v{NEG+d}, -1")
    quad_addrs(a)
    a(f"s_mul_i32 {sT[0]}, {sR}, {GR}\ns_add_u32 {sT[0]}, {sT[0]}, {G_OFF}")
    for sg in range(4):
        a(f"""
        s_xor_b32 {sT[1]}, {sCB}, {sg}
        s_lshl_b32 {sT[1]}, {sT[1]}, 10
        s_add_u32 {sGS[sg]}, {sT[0]}, {sT[1]}
        s_add_u32 {sGP[sg]}, {sGS[sg]}, {sT[1]}
        s_lshl2_add_u32 {sGQ[sg]}, {sT[1]}, {sT[0]}
        s_add_u32 {sGP[sg]}, {sGP[sg]}, {64*1024}
        s_add_u32 {sGS[sg]}, {sGS[sg]}, {96*1024}
        """)
    a(f"""
    s_lshl_b32 {sPIN}, {sR}, 4
    s_add_u32 {sPIN}, {sPIN}, {sCB}
    s_mul_i32 {sPIN}, {sPIN}, 6144
    s_add_u32 {sPIN}, {sPIN}, {P_OFF}
    s_add_u32 {sPIN2}, {sPIN}, 4096
    """)

def quad_addrs(a):
    a(f"""
    v_lshrrev_b32 v26, 3, {vL}
    v_and_b32 v27, 7, {vL}
    v_mul_u32_u24 v28, 3584, v26
    v_and_b32 v26, 2, v26
    v_xor_b32 v27, v27, v26
    v_lshl_add_u32 {vDQ}, v27, 4, v28
    v_xor_b32 {vDQU}, 64, {vDQ}
    """)

def w1_addrs(a):
    a(f"""
    v_lshrrev_b32 v26, 2, {vL}
    v_and_b32 v27, 3, {vL}
    v_mul_u32_u24 v28, 3584, v26
    v_lshl_add_u32 {vDP}, v27, 4, v28
    v_xor_b32 {vDPU}, 32, {vDP}
    v_lshrrev_b32 v26, 1, {vL}
    v_and_b32 v27, 1, {vL}
    v_mul_u32_u24 v28, 3584, v26
    v_lshl_add_u32 {vDS}, v27, 4, v28
    v_xor_b32 v26, 4, v26
    v_mul_u32_u24 v28, 3584, v26
    v_lshl_add_u32 {vDSU}, v27, 4, v28
    v_bfe_u32 v26, {vL}, 2, 2
    v_lshrrev_b32 v27, 5, {vL}
    v_lshl_add_u32 v26, v27, 3, v26
    v_bfe_u32 v27, {vL}, 4, 1
    v_and_b32 v28, 1, {vL}
    v_bfe_u32 v29, {vL}, 1, 1
    v_lshl_or_b32 v28, v28, 1, v29
    v_lshlrev_b32 v28, 3, v28
    v_lshl_add_u32 v8, v26, 7, v28
    v_and_b32 v29, 2, v26
    v_lshl_add_u32 v8, v29, 4, v8
    v_mul_u32_u24 v29, {32768 + 64}, v27
    v_add_u32 v8, v8, v29
    v_add_u32 v8, {L_H1}, v8
    v_xor_b32 v9, 32, v8
    v_xor_b32 v10, 64, v8
    v_xor_b32 v11, 96, v8
    v_lshl_add_u32 v12, v26, 6, v28
    v_mul_u32_u24 v29, {32768 + 32}, v27
    v_add_u32 v12, v12, v29
    v_add_u32 v12, {L_H1}, v12
    v_xor_b32 v13, 32, v12
    v_lshl_add_u32 v14, v26, 5, v28
    v_mul_u32_u24 v29, {16384 + 128}, v27
    v_add_u32 v14, v14, v29
    v_add_u32 v14, {L_S}, v14
    v_xor_b32 v15, 128, v14
    """)

def phase_a(a):
    X, T1, COS, NSIN, SIN, MRE, MIM = 64, 96, 128, 136, 144, 152, 160
    DRE, DIM = 168, 200
    ONE_E, ONE_O, GA, GB, SM = 232, 236, 240, 244, 248
    a.stamp("_gp")
    a(f"""
    v_mul_u32_u24 v16, {XP}, v6
    s_mul_i32 {sT[0]}, {sWID}, {8*XP}
    s_add_u32 {sT[0]}, {sT[0]}, {LX}
    v_add3_u32 v16, v16, v5, {sT[0]}
    v_and_b32 v9, 1, {vL}
    v_cmp_eq_u32 vcc, 1, v9
    v_mov_b32 v10, 0x3f803f80
    v_cndmask_b32 v{ONE_O}, 0, v10, vcc
    v_xor_b32 v{ONE_E}, v10, v{ONE_O}
    """)
    for d in range(1, 4):
        a(f"v_mov_b32 v{ONE_O+d}, v{ONE_O}\nv_mov_b32 v{ONE_E+d}, v{ONE_E}")
    a(f"""
    s_lshl_b32 {sT[0]}, {sP}, 3
    v_add_u32 v10, {sT[0]}, v3
    v_cvt_f32_u32 v11, v10
    v_mul_f32 v11, {fl(-1/32)}, v11
    v_lshlrev_b32 v12, 3, v4
    v_cvt_f32_u32 v12, v12
    v_mul_f32 v12, v11, v12
    """)
    for j in range(8):
        a(f"v_cos_f32 v{MRE+j}, v12\nv_sin_f32 v{MIM+j}, v12")
        if j < 7: a("v_add_f32 v12, v12, v11")
    a.stamp("_M")
    a(f"""
    v_lshrrev_b32 v11, 5, {vL}
    v_lshlrev_b32 v11, 17, v11
    v_and_b32 v12, 16, {vL}
    v_lshl_add_u32 v18, v10, 5, v12
    v_xor_b32 v19, 512, v18
    v_add_u32 v18, v18, v11
    v_add_u32 v19, v19, v11
    """)
    for d in range(4):
        a(f"v_cvt_pk_bf16_f32 v{COS+d}, v{MRE+2*d}, v{MRE+2*d+1}\nv_cvt_pk_bf16_f32 v{NSIN+d}, v{MIM+2*d}, v{MIM+2*d+1}")
    a(f"s_mov_b32 {sT[2]}, 0x80000000\ns_mov_b32 {sT[3]}, 0x80008000\ns_mov_b32 {sT[4]}, 0x8000")
    for d in range(4):
        a(f"v_xor_b32 v{COS+4+d}, {sT[2]}, v{COS+d}\nv_xor_b32 v{NSIN+4+d}, {sT[2]}, v{NSIN+d}")
        a(f"v_xor_b32 v{SIN+d}, {sT[3]}, v{NSIN+d}\nv_xor_b32 v{SIN+4+d}, {sT[4]}, v{NSIN+d}")
    a.stamp("_T2")
    a(f"""
    s_lshl_b32 {sT[0]}, {sQ}, 3
    v_lshrrev_b32 v10, 1, v3
    v_add_u32 v10, {sT[0]}, v10
    v_cvt_f32_u32 v11, v10
    v_mul_f32 v11, {fl(1/512)}, v11
    s_lshl_b32 {sT[0]}, {sWID}, 3
    v_lshl_add_u32 v12, v4, 5, {sT[0]}
    v_cvt_f32_u32 v13, v12
    v_cmp_ne_u32 s[46:47], 0, v12
    v_cvt_f32_u32 v12, v9
    v_mul_f32 v12, {fl(0.25)}, v12
    v_fmac_f32 v12, v11, v13
    v_and_b32 v13, 1, v10
    v_lshlrev_b32 v14, 4, v13
    v_mul_lo_u32 v15, v13, {sT[3]}
    v_bfe_u32 v10, v10, 1, 1
    v_mul_lo_u32 v10, v10, {sT[3]}
    v_lshlrev_b32 v13, 15, v13
    v_xor_b32 v13, v13, v10
    """)
    for j in range(8):
        t = T1 + 4 * j
        a(f"v_cos_f32 v26, v12\nv_sin_f32 v27, v12")
        if j < 7: a("v_add_f32 v12, v12, v11")
        a(f"""
        v_cvt_pk_bf16_f32 v{t}, v26, v27
        v_alignbit_b32 v{t+1}, v{t}, v{t}, v14
        v_xor_b32 v{t+2}, v15, v{t}
        v_xor_b32 v{t+1}, v13, v{t+1}
        v_xor_b32 v{t+3}, v15, v{t+1}
        """)
    a.stamp("_T1")
    a(f"""
    v_cndmask_b32 v{T1}, 0, v{T1}, s[46:47]
    v_lshl_add_u32 v11, v4, 3, v6
    v_mul_u32_u24 v11, {XP}, v11
    v_and_b32 v12, 3, {vL}
    v_lshl_add_u32 v11, v12, 6, v11
    s_lshl_b32 {sT[0]}, {sWID}, 4
    s_add_u32 {sT[0]}, {sT[0]}, {LX}
    v_add_u32 v17, {sT[0]}, v11
    v_lshl_add_u32 v12, v9, 2, v4
    s_lshl_b32 {sT[0]}, {sWID}, 3
    v_add_u32 v12, {sT[0]}, v12
    s_mov_b32 {sT[0]}, {LST}
    v_lshl_add_u32 v13, v12, 1, {sT[0]}
    v_lshl_add_u32 v12, v12, 2, {sT[0]}
    v_lshl_add_u32 v14, v4, 4, {sT[0]}
    v_lshl_add_u32 v15, v4, 5, {sT[0]}
    s_lshl_b32 {sT[0]}, {sWID}, 8
    s_add_u32 {sT[0]}, {sT[0]}, {LH}
    v_lshlrev_b32 v10, 12, v4
    v_lshl_add_u32 v10, v3, 4, v10
    v_add_u32 v10, {sT[0]}, v10
    v_lshrrev_b32 v11, 3, v3
    v_lshlrev_b32 v11, 10, v11
    v_lshl_add_u32 v11, v4, 8, v11
    v_and_b32 v26, 7, {vL}
    v_lshl_add_u32 v11, v26, 5, v11
    s_lshl_b32 {sT[0]}, {sWID}, 11
    s_add_u32 {sT[0]}, {sT[0]}, {LH}
    v_add_u32 v11, {sT[0]}, v11
    """)
    late_setup(a)
    warm(a, "t")
    a(f"s_waitcnt lgkmcnt(0)\ns_add_u32 {sTAG}, {sTAG}, 0x9e3779b9")
    a.stamp("tables")
    for i in range(8):
        a.wait(f"x{i}")
        if i == 0: a.stamp("x0")
        if i == 7: a.stamp("_x7")
        g = GA if i < 4 else GB
        a(f"{MF16} {vr(g)}, {vr(X+4*i)}, {vr(X+4*i)}, {vr(g) if i % 4 else 0}")
        a(f"ds_write_b128 v16, {vr(X+4*i)} offset:{(i//4)*4*XP + 256*(i%4)}")
        a(f"{MF16} {vr(SM)}, {vr(X+4*i)}, {vr(ONE_E if i < 4 else ONE_O)}, {vr(SM) if i else 0}")
    warm(a, "x7")
    a.clr("a0")
    for g, t in ((GA, 26), (GB, 27)):
        a(f"v_mov_b32_dpp v{t}, v{g} quad_perm:[0,0,0,0] row_mask:0xf bank_mask:0xf")
    for c in range(1, 4):
        for g, t in ((GA, 26), (GB, 27)):
            a(f"v_add_f32_dpp v{t}, v{g+c}, v{t} quad_perm:[{c},{c},{c},{c}] row_mask:0xf bank_mask:0xf")
        a(f"v_add_f32 v{SM}, v{SM}, v{SM+c}")
    a(f"""
    v_cndmask_b32 v27, v26, v27, vcc
    v_mul_f32 v26, {fl(1/512)}, v{SM}
    v_mul_f32 v27, {fl(1/512)}, v27
    v_fma_f32 v27, -v26, v26, v27
    v_max_f32 v27, 0, v27
    v_add_f32 v27, {fl(1e-5)}, v27
    v_rsq_f32 v27, v27
    v_cvt_pk_bf16_f32 v28, -v26, -v26
    v_lshlrev_b32 v29, 16, v28
    v_add_f32 v29, v29, v26
    v_cvt_pk_bf16_f32 v29, -v29, -v29
    s_mov_b32 exec_lo, 0x00300003
    s_mov_b32 exec_hi, 0x30000300
    ds_write_b32 v12, v27
    ds_write_b16 v13, v28 offset:128
    ds_write_b16 v13, v29 offset:192
    ds_write_b32 v12, v26 offset:256
    s_mov_b64 exec, -1
    """)
    a.clr("a1")
    a("s_waitcnt lgkmcnt(0)\ns_barrier")
    a.stamp("B1")
    a(f"""
    ds_read_b128 {vr(32)}, v15
    ds_read_b128 {vr(36)}, v15 offset:16
    ds_read_b128 {vr(40)}, v14 offset:128
    ds_read_b128 {vr(44)}, v14 offset:192
    """)
    def trread(i):
        vv, qq = i // 4, i % 4
        a(f"ds_read_b64_tr_b16 {vr(X+4*i,2)}, v17 offset:{8*vv + 256*qq}")
        a(f"ds_read_b64_tr_b16 {vr(X+4*i+2,2)}, v17 offset:{8*vv + 256*qq + 4*XP}")
    for i in range(5): trread(i)
    warm(a, "B1")
    a.clr("a2")
    BRE, BIM, CRE, CIM = 48, 52, 56, 60
    a("s_waitcnt lgkmcnt(12)")
    for j in range(8):
        a(f"v_mul_f32 v{MRE+j}, v{MRE+j}, v{32+j}")
    for d in range(4):
        a(f"v_cvt_pk_bf16_f32 v{BRE+d}, v{MRE+2*d}, v{MRE+2*d+1}")
    a("s_waitcnt lgkmcnt(8)")
    for i in range(5, 8): trread(i)
    a(f"{MF16} {vr(CRE)}, {vr(40)}, {vr(BRE)}, 0")
    for j in range(4): a(f"v_mul_f32 v{MIM+j}, v{MIM+j}, v{32+j}")
    a(f"{MF16} {vr(CRE)}, {vr(44)}, {vr(BRE)}, {vr(CRE)}")
    for j in range(4, 8): a(f"v_mul_f32 v{MIM+j}, v{MIM+j}, v{32+j}")
    for i in range(4):
        a(f"s_waitcnt lgkmcnt({14-2*i})")
        a(f"{MF16} {vr(DRE+4*i)}, {vr(X+4*i)}, {vr(BRE)}, {vr(CRE)}")
        a(f"v_cvt_pk_bf16_f32 v{BIM+i}, v{MIM+2*i}, v{MIM+2*i+1}")
    a(f"{MF16} {vr(CIM)}, {vr(40)}, {vr(BIM)}, 0\n{MF16} {vr(CIM)}, {vr(44)}, {vr(BIM)}, {vr(CIM)}")
    for i in range(4):
        a(f"{MF16} {vr(DIM+4*i)}, {vr(X+4*i)}, {vr(BIM)}, {vr(CIM)}")
    a("s_waitcnt lgkmcnt(0)")
    for i in range(4, 8):
        a(f"{MF16} {vr(DRE+4*i)}, {vr(X+4*i)}, {vr(BRE)}, {vr(CRE)}")
    PA = 64
    def pack(j):
        vv, u = j // 4, j % 4
        return [f"v_cvt_pk_bf16_f32 v{PA+4*j+qq}, v{DRE+4*(4*vv+qq)+u}, v{DIM+4*(4*vv+qq)+u}" for qq in range(4)]
    for i in range(4, 8):
        a(f"{MF16} {vr(DIM+4*i)}, {vr(X+4*i)}, {vr(BIM)}, {vr(CIM)}")
        a("\n".join(pack(i - 4)))
    EE = [152, 156, 160, 164, 232, 236, 240, 244]
    for j in range(4):
        a(f"{MF16} {vr(EE[j])}, {vr(PA+4*j)}, {vr(T1+4*j)}, 0")
        a("\n".join(pack(4 + j)))
    for j in range(4, 8):
        a(f"{MF16} {vr(EE[j])}, {vr(PA+4*j)}, {vr(T1+4*j)}, 0")
    for r in range(4):
        for d in range(4):
            a(f"v_cvt_pk_bf16_f32 v{32+4*r+d}, v{EE[2*d]+r}, v{EE[2*d+1]+r}")
        a(f"ds_write_b128 v10, {vr(32+4*r)} offset:{r*1024}")
    a(f"""
    s_lshl_b32 {sT[5]}, {sP}, 2
    s_add_u32 {sT[5]}, {sT[5]}, {sWID}
    s_lshl_b32 {sT[0]}, {sT[5]}, 18
    s_lshl_b32 {sT[1]}, {sS2}, 11
    s_add_u32 {sT[0]}, {sT[0]}, {sT[1]}
    s_lshl_b32 {sT[1]}, {sQ}, 10
    s_add_u32 {sT[0]}, {sT[0]}, {sT[1]}
    s_mov_b32 {sT[1]}, {sT[5]}
    """)
    a.clr("a3")
    a("s_waitcnt lgkmcnt(0)\ns_barrier")
    a.stamp("B2")
    a(f"""
    L_a_h2:
    ds_read_b128 {vr(64)}, v11
    ds_read_b128 {vr(68)}, v11 offset:16
    s_waitcnt lgkmcnt(1)
    {MF16} {vr(32)}, {vr(64)}, {vr(COS)}, 0
    {MF16} {vr(36)}, {vr(64)}, {vr(NSIN)}, 0
    s_waitcnt lgkmcnt(0)
    {MF16} {vr(32)}, {vr(68)}, {vr(SIN)}, {vr(32)}
    {MF16} {vr(36)}, {vr(68)}, {vr(COS)}, {vr(36)}
    {MF16} {vr(40)}, {vr(64)}, {vr(COS+4)}, 0
    {MF16} {vr(44)}, {vr(64)}, {vr(NSIN+4)}, 0
    {MF16} {vr(40)}, {vr(68)}, {vr(SIN+4)}, {vr(40)}
    {MF16} {vr(44)}, {vr(68)}, {vr(COS+4)}, {vr(44)}
    s_cmp_eq_u32 {sT[1]}, 99
    s_cselect_b32 exec_hi, 0, -1
    """)
    for eb in range(2):
        for r in range(4):
            a(f"v_cvt_pk_bf16_f32 v{48+4*eb+r}, v{32+8*eb+r}, v{36+8*eb+r}")
        a.vm(f"buffer_store_dwordx4 {vr(48+4*eb)}, v{18+eb}, {srd('WS')}, {sT[0]} offen sc1", "ust")
    a(f"""
    s_mov_b64 exec, -1
    s_cmp_lg_u32 {sT[1]}, 4
    s_cbranch_scc1 L_a_done
    s_mov_b32 {sT[1]}, 99
    v_add_u32 v11, 8192, v11
    s_add_u32 {sT[0]}, {sT[0]}, {8 << 17}
    s_branch L_a_h2
    L_a_done:
    s_and_b32 {sT[0]}, {sS2}, 31
    s_sub_u32 {sT[1]}, 32, {sT[0]}
    s_min_u32 {sT[0]}, {sT[0]}, {sT[1]}
    s_lshr_b32 {sT[1]}, {sT[0]}, 1
    s_cmp_eq_u32 {sT[0]}, 16
    s_cselect_b32 {sT[1]}, 4, {sT[1]}
    s_lshl_b32 {sT[0]}, {sQ}, 4
    s_add_u32 {sT[0]}, {sT[0]}, {sT[5]}
    s_cmp_lg_u32 {sT[0]}, {sT[1]}
    s_cbranch_scc1 L_a_nomu
    v_lshlrev_b32 v26, 2, {vL}
    v_add_u32 v27, {LST + 256}, v26
    v_and_b32 v28, 31, {vL}
    v_mul_u32_u24 v28, {XP}, v28
    v_add_u32 v28, {LX}, v28
    ds_read_b32 v27, v27
    ds_read_u16 v28, v28
    s_lshl_b32 {sT[0]}, {sS2}, 8
    s_add_u32 {sT[0]}, {sT[0]}, {MU_OFF}
    v_cmp_gt_u32 vcc, 32, {vL}
    s_waitcnt lgkmcnt(0)
    v_lshlrev_b32 v28, 16, v28
    v_cndmask_b32 v27, v28, v27, vcc
    """)
    a.vm(f"buffer_store_dword v27, v26, {srd('WS')}, {sT[0]} offen sc1", "ust", cond=True)
    a("L_a_nomu:")
    a.stamp("ust")

FM, UU, ACCB, XX = 96, 128, 32, 160
HA = 128
LE = L_S + 16384

class Stream:
    cur = None
    def __init__(self, a, n, v, mat, tag, step, rows, colshift, colbase, ldsshift, ldsbase):
        self.a, self.n, self.i = a, n, 0
        self.p = (v, mat, tag, step, rows, colshift, colbase, ldsshift, ldsbase)
    def __call__(self, k=1):
        v, mat, tag, step, rows, cs, cb, ls, lb = self.p
        for _ in range(min(k, self.n - self.i)):
            if Stream.cur is not self:
                dma_setup(self.a, rows, cs, cb + step * self.i, ls, lb + 1024 * self.i)
                Stream.cur = self
            dma(self.a, v, mat, tag, step)
            self.i += 1
    def left(self): return self.n - self.i

class Chain:
    def __init__(self, *st): self.st = st
    def __call__(self, k=1):
        for _ in range(k):
            for x in self.st:
                if x.left():
                    x(); break
    def left(self): return sum(x.left() for x in self.st)

def tr_reads(a, lo, hi, between=None):
    for n in range(lo, hi):
        ks, b = n // 4, n % 4
        d = 64 * b + 4 * ks
        a(f"ds_read_b64_tr_b16 {ar(d,2)}, v{vRQ[b]} offset:{2048*ks}\nds_read_b64_tr_b16 {ar(d+2,2)}, v{vRQ[b]} offset:{2048*ks+512}")
        if n % 4 == 3:
            if between: between(n // 4)
            a("s_waitcnt lgkmcnt(6)")

def window1(a):
    cfg = a.cfg
    Stream.cur = None
    Q = lambda h, m: Stream(a, 8, (vDQ, vDQU)[m], ("WG", "WU")[m], f"q{h}", 8 * 3584, 64, 7, h * 256 * 3584, 13, h * L_H1 + m * 32768)
    a.q1g, a.q1u = Q(1, 0), Q(1, 1)
    a.q0 = Chain(Q(0, 0), Q(0, 1))
    a.pair = Chain(*[Stream(a, 8, (vDP, vDPU)[m], ("WG", "WU")[m], "pair", 16 * 3584, 128, 6, 2048, 13, L_H1 + m * 32768) for m in range(2)])
    a.sg = Stream(a, 4, vDS, "WG", "single", 32 * 3584, 128, 5, 3072, 12, L_S)
    a.su = Stream(a, 4, vDSU, "WU", "single", 32 * 3584, 128, 5, 3072, 12, L_S + 16384)
    a.q1g(cfg.get("n0", 4))
    a(f"""
    s_sub_u32 {sT1C}, 32, {sRB}
    s_cmp_eq_u32 {sRB}, 0
    s_cselect_b32 {sT1C}, 16, {sT1C}
    s_cmp_lt_u32 {sWID}, 2
    s_cselect_b32 {sT1C}, {sRB}, {sT1C}
    s_and_b32 {sT[6]}, {sWID}, 1
    s_lshl_b32 {sT[0]}, {sT[6]}, 10
    s_add_u32 {sT[0]}, {sT[0]}, {sT1C}
    v_and_b32 v3, 31, {vL}
    v_lshrrev_b32 v4, 5, {vL}
    v_lshl_add_u32 v5, v3, 5, {sT[0]}
    s_cmp_gt_u32 {sT1C}, 16
    s_cselect_b32 {sT[1]}, 0x80000000, 0
    s_or_b32 {sT[1]}, {sT[1]}, {fl(1/2048)}
    v_cvt_f32_u32 v26, v5
    v_mul_f32 v26, {sT[1]}, v26
    s_lshl_b32 {sT[1]}, {sT[6]}, 4
    v_lshl_add_u32 v27, v4, 5, {sT[1]}
    v_xor_b32 v16, 16, v27
    v_cvt_f32_u32 v27, v27
    v_cvt_f32_u32 v16, v16
    v_mul_f32 v27, v26, v27
    s_lshl_b32 {sT[7]}, {sT[0]}, 10
    s_lshl_b32 {sT[0]}, {sT[5]}, 10
    s_lshl_b32 {sT[1]}, {sXCD}, 7
    s_add_u32 {sT[0]}, {sT[0]}, {sT[1]}
    s_lshr_b32 {sT[1]}, {sS2}, 3
    s_lshl1_add_u32 {sT[1]}, {sT[1]}, {sQ}
    s_lshl2_add_u32 {sT[0]}, {sT[1]}, {sT[0]}
    s_add_u32 {sT[0]}, {sT[0]}, {F1_OFF}
    v_mov_b32 v30, {sTAG}
    v_lshlrev_b32 v31, 12, {vL}
    s_cmp_eq_u32 {sT[5]}, 4
    s_cselect_b32 {sT[1]}, 3, 1
    """)
    def fm(lo, hi, st):
        for d in range(lo, hi):
            a(f"v_cos_f32 v28, v27\nv_sin_f32 v29, v27")
            a("v_mul_f32 v27, v26, v16" if d == 15 else "v_add_f32 v27, v27, v26")
            a(f"v_cvt_pk_bf16_f32 v{FM+d}, v28, v29")
            if d % cfg.get("fm_step", 2) == 0: st()
    nfm = cfg.get("fm_first", 12)
    fm(0, nfm, a.q1g)
    a.wait("ust")
    a(f"s_mov_b32 exec_lo, {sT[1]}\ns_mov_b32 exec_hi, 0")
    a.vm(f"buffer_store_dword v30, v31, {srd('WS')}, {sT[0]} offen sc1", "f1st")
    a("s_mov_b64 exec, -1")
    a.stamp("f1st")
    a.q1g(8)
    a("s_barrier")
    a(f"""
    v_lshrrev_b32 v17, 2, {vL}
    v_bfe_u32 v18, {vL}, 4, 2
    v_xor_b32 v18, v18, {vL}
    v_and_b32 v18, 3, v18
    v_lshlrev_b32 v18, 4, v18
    v_lshl_add_u32 v17, v17, 15, v18
    s_lshl_b32 {sT[0]}, {sCB}, 6
    s_add_u32 {sT[0]}, {sT[0]}, {sT[7]}
    s_lshl_b32 {sM0}, {sWID}, 12
    s_add_u32 m0, {sM0}, {LE}
    s_add_u32 {sT[1]}, {sT[0]}, {16*32768 - 1024}
    """)
    a.vm(f"buffer_load_dwordx4 v17, {srd('X')}, {sT[0]} offen lds", "xres")
    a.vm(f"buffer_load_dwordx4 v17, {srd('X')}, {sT[1]} offen offset:1024 lds", "xres")
    Stream.cur = None
    q = Chain(a.q1u, a.q0)
    fm(nfm, 32, q)
    a.q1u(8)
    warm(a, "w1")
    a.clr("w1")
    w1_addrs(a)
    a.q0(cfg.get("n1", 4))

def phase_b(a):
    cfg = a.cfg
    a(f"""
    s_cmp_gt_u32 {sT1C}, 16
    s_cselect_b32 {sT[2]}, {sRB}, {sT1C}
    s_cselect_b32 {sT[4]}, -1, 0
    v_and_b32 v16, 63, v5
    v_lshlrev_b32 v16, 8, v16
    v_lshrrev_b32 v26, 6, v5
    v_lshl_add_u32 v16, v26, 2, v16
    v_and_b32 v26, 0x13, v3
    v_and_b32 v27, 4, v3
    v_lshl_or_b32 v26, v27, 1, v26
    v_and_b32 v27, 8, v3
    v_lshrrev_b32 v27, 1, v27
    v_or_b32 v26, v26, v27
    s_lshl_b32 {sT[0]}, {sCB}, 5
    v_add_u32 v26, {sT[0]}, v26
    v_xor_b32 v26, {sT[4]}, v26
    v_subrev_u32 v26, {sT[4]}, v26
    v_and_b32 v17, 7, v26
    v_lshlrev_b32 v17, 2, v17
    v_bfe_u32 v27, v26, 3, 1
    v_lshl_add_u32 v17, v27, 10, v17
    v_bfe_u32 v27, v26, 4, 5
    v_lshl_add_u32 v17, v27, 5, v17
    v_lshl_add_u32 v17, v4, 16, v17
    v_add_u32 v18, 4096, v17
    v_and_b32 v26, 7, {vL}
    v_lshlrev_b32 v26, 7, v26
    v_and_b32 v27, 56, {vL}
    v_add_u32 v19, v26, v27
    s_lshr_b32 {sT[3]}, {sT[2]}, 1
    s_lshl_b32 {sT[3]}, {sT[3]}, 10
    s_add_u32 {sT[3]}, {sT[3]}, {F1_OFF}
    s_lshl2_add_u32 {sT[2]}, {sT[2]}, {sT[6]}
    s_lshl_b32 {sT[2]}, {sT[2]}, 15
    s_mov_b32 {sT[5]}, {MU_OFF}
    s_lshl_b32 {sT[0]}, {sWID}, 12
    s_add_u32 {sT[0]}, {sT[0]}, {LE}
    v_add_u32 v30, {sT[0]}, {vL16}
    v_xor_b32 v31, 4096, v30
    s_lshl_b32 {sT[0]}, {sR}, 4
    s_add_u32 {sT[0]}, {sT[0]}, {sCB}
    s_lshl_b32 {sT[1]}, {sT[0]}, 7
    s_add_u32 {sT[1]}, {sT[1]}, {SS_OFF}
    s_lshl_b32 {sT[0]}, {sT[0]}, 11
    s_add_u32 {sT[0]}, {sT[0]}, {HC_OFF}
    """)
    a(f"""
    v_bfe_u32 v26, v3, 2, 2
    v_xor_b32 v26, v26, v4
    v_lshlrev_b32 v26, 4, v26
    v_lshl_add_u32 v26, v3, 6, v26
    v_sub_u32 v27, v30, {vL16}
    v_add_u32 v26, v26, v27
    v_xor_b32 v27, 32, v26
    v_lshlrev_b32 v7, 10, v5
    """)
    a.wait("xres")
    a(f"ds_read_b128 {vr(XX)}, v26\nds_read_b128 {vr(XX+4)}, v27")
    ntr = cfg.get("ntr", [0, 32])
    if isinstance(ntr, str): ntr = [int(x) for x in ntr.split(":")]
    if ntr[0]:
        a.wait("q1"); a("s_barrier")
        tr_reads(a, 0, ntr[0], lambda k: a.q0(cfg.get("tr_dma", 1)))
    a("s_waitcnt lgkmcnt(0)")
    for d in range(8):
        a(f"v_lshlrev_b32 v{ACCB+2*d}, 16, v{XX+d}\nv_and_b32 v{ACCB+2*d+1}, 0xffff0000, v{XX+d}")
    a.stamp("poll1")
    spin_flags(a, "p1", f"buffer_load_dwordx2 v[26:27], v19, {srd('WS')}, {sT[3]} offen sc1",
               f"v_xor_b32 v26, {sTAG}, v26\nv_xor_b32 v27, {sTAG}, v27\nv_or_b32 v26, v26, v27\nv_cmp_ne_u32 vcc, 0, v26")
    a.stamp("got1")
    a.vm(f"buffer_load_dword v28, v16, {srd('WS')}, {sT[5]} offen sc1", "mu")
    a.vm(f"buffer_load_dword v6, v16, {srd('WS')}, {sT[5]} offen offset:128 sc1", "mu")
    for kq in range(4):
        for dd in range(4):
            a.vm(f"buffer_load_dword v{UU+4*kq+dd}, v{17+dd//2}, {srd('WS')}, {sT[2]} offen offset:{2048*(dd&1)} sc1", f"u{kq}")
        if kq < 3: a(f"s_add_u32 {sT[2]}, {sT[2]}, 8192")
    a.stamp("_ui")
    a.clr("b1")
    a.q0(cfg.get("n2", 0))
    if ntr[1] > ntr[0]:
        if not ntr[0]: a("s_barrier")
        tr_reads(a, ntr[0], ntr[1])
    a.ntr = ntr[1]
    a(f"v_mov_b32 v26, 0\nv_lshlrev_b32 v16, 2, {vL}")
    a.wait("mu")
    for d in range(16):
        a(f"v_sub_f32 v{ACCB+d}, v{ACCB+d}, v28")
    for kq in range(4):
        a.wait(f"u{kq}")
        if kq in (0, 3): a.stamp(f"_u{kq}")
        a(f"ds_write_b128 v30, {vr(UU+4*kq)} offset:{1024*kq}")
        if kq < 2: a(f"{MF32} {vr(ACCB,16)}, {vr(UU+4*kq)}, {vr(FM+4*kq)}, {vr(ACCB,16)}")
    a("s_waitcnt lgkmcnt(0)\ns_barrier")
    for kq in range(4):
        a(f"ds_read_b128 {vr(UU+16+4*kq)}, v31 offset:{1024*kq}")
    for kq in range(2, 8):
        if kq >= 4: a(f"s_waitcnt lgkmcnt({7-kq})")
        a(f"{MF32} {vr(ACCB,16)}, {vr(UU+4*kq)}, {vr(FM+4*kq)}, {vr(ACCB,16)}")
    for ks in range(2):
        for d in range(4):
            a(f"v_cvt_pk_bf16_f32 v{48+4*ks+d}, v{ACCB+8*ks+2*d}, v{ACCB+8*ks+2*d+1}")
        a.vm(f"buffer_store_dwordx4 {vr(48+4*ks)}, {vL16}, {srd('WS')}, {sT[0]} offen offset:{1024*ks} sc1", "hst")
    for d in range(8):
        a(f"v_dot2c_f32_bf16 v26, v{48+d}, v{48+d}")
    a("v_mov_b32 v27, v26\nv_permlane32_swap_b32 v26, v27\nv_add_f32 v26, v26, v27\ns_mov_b32 exec_hi, 0")
    a.vm(f"buffer_store_dword v26, v16, {srd('WS')}, {sT[1]} offen sc1", "hst")
    a("s_mov_b64 exec, -1")
    a.clr("b2")
    assert not a.clr.q or cfg.get("hostclear")
    a.stamp("hst")

def epi_block(a, acc, dst):
    o = []
    for j in range(0, 8, 2):
        t0, t1 = 26, 27
        g0, g1, u0, u1 = acc + j, acc + j + 1, acc + 8 + j, acc + 9 + j
        o += [f"v_mul_f32 v{t0}, v16, v{g0}", f"v_mul_f32 v{t1}, v16, v{g1}",
              f"v_exp_f32 v{t0}, v{t0}", f"v_exp_f32 v{t1}, v{t1}",
              f"v_mul_f32 v{u0}, v{g0}, v{u0}",
              f"v_fma_f32 v{t0}, v{t0}, v17, v17", f"v_fma_f32 v{t1}, v{t1}, v17, v17",
              f"v_rcp_f32 v{t0}, v{t0}", f"v_rcp_f32 v{t1}, v{t1}",
              f"v_mul_f32 v{u1}, v{g1}, v{u1}",
              f"v_mul_f32 v{u0}, v{u0}, v{t0}", f"v_mul_f32 v{u1}, v{u1}, v{t1}",
              f"v_cvt_pk_bf16_f32 v{dst + j//2}, v{u0}, v{u1}"]
    return [(cost(l), l) for l in o]

def checked(a, name, loads, regs):
    a.wait(name)
    chk = []
    rs = list(regs)
    chk.append(f"v_max3_u32 v28, v{rs[0]}, v{rs[1]}, v{rs[2]}")
    for i in range(3, len(rs), 2):
        chk.append(f"v_max3_u32 v28, v28, v{rs[i]}, v{rs[min(i+1, len(rs)-1)]}")
    chk.append("v_cmp_eq_u32 vcc, -1, v28")
    a("\n".join(chk))
    a(f"s_cbranch_vccnz L_{name}_slow\nL_{name}_ok:")
    t = [f"L_{name}_slow:", f"s_mov_b32 {sT[8]}, 0", f"L_{name}_lp:", "s_nop 15"] + loads
    if a.cfg.get("stamps"): t += [f"s_add_u32 s100, s100, {1 << (4 * len(a.tail))}"]
    t += [f"s_add_u32 {sT[8]}, {sT[8]}, 1", f"s_cmp_gt_u32 {sT[8]}, {SPIN}", "s_waitcnt vmcnt(0)", f"s_cbranch_scc1 L_{name}_ok"]
    t += chk + [f"s_cbranch_vccnz L_{name}_lp", f"s_branch L_{name}_ok"]
    a.tail.append("\n".join(t))

def ffn(a):
    cfg = a.cfg
    sHC = sT[6]
    a(f"""
    s_lshl_b32 {sT[0]}, {sR}, 9
    s_add_u32 {sT[3]}, {sT[0]}, {F2_OFF}
    s_lshr_b32 {sT[1]}, {sCB}, 2
    s_lshl_b32 {sT[1]}, {sT[1]}, 7
    s_and_b32 {sT[2]}, {sCB}, 3
    s_lshl2_add_u32 {sT[1]}, {sT[2]}, {sT[1]}
    s_add_u32 {sT[0]}, {sT[3]}, {sT[1]}
    v_mov_b32 v30, {sTAG}
    v_mov_b32 v31, 0
    v_bfe_u32 v19, {vL}, 2, 2
    v_lshlrev_b32 v19, 7, v19
    v_and_b32 v26, 3, {vL}
    v_lshl_add_u32 v19, v26, 2, v19
    s_lshl_b32 {sHC}, {sR}, 15
    s_add_u32 {sHC}, {sHC}, {HC_OFF}
    """)
    def publish():
        a.wait("hst", "clr")
        a("s_mov_b64 exec, 1")
        a.vm(f"buffer_store_dword v30, v31, {srd('WS')}, {sT[0]} offen sc1", "f2st")
        a("s_mov_b64 exec, -1")
        a.stamp("f2st")
    kp = cfg.get("pub_at", 15)
    pub = []
    def btw(k):
        if k == kp: publish(); pub.append(1)
        else: a.q0(cfg.get("tr_dma2", 1))
    tr_reads(a, a.ntr, 64, btw)
    if not pub:
        a.q0(cfg.get("n3", 4)); publish()
    a.q0(16)
    for b in range(4): a(f"v_subrev_u32 v{vRQ[b]}, {L_H1}, v{vRQ[b]}")
    a("s_waitcnt lgkmcnt(0)\ns_barrier")
    a.pair(cfg.get("n4", 16))
    a.sg(cfg.get("n5", 0))
    spin_flags(a, "p2", f"buffer_load_dword v26, v19, {srd('WS')}, {sT[3]} offen sc1", f"v_cmp_ne_u32 vcc, {sTAG}, v26")
    a.stamp("got2")
    nA = [0]
    def a_load():
        ks = nA[0]
        a.vm(f"buffer_load_dwordx4 {vr(HA+4*ks)}, {vL16}, {srd('WS')}, {sHC} offen offset:{1024*(ks%4)} sc1", f"a{ks}")
        if ks % 4 == 3: a(f"s_add_u32 {sHC}, {sHC}, 4096")
        nA[0] += 1
    APD = cfg.get("apd", 8)
    for _ in range(APD): a_load()
    a("s_barrier")
    a(f"s_or_b32 {sT[0]}, s2, {sWID}\ns_cbranch_scc1 L_noep\ns_mov_b32 {sT[0]}, {EP_OFF}\ns_mov_b64 exec, 1")
    a.vm(f"buffer_store_dword v30, v31, {srd('WS')}, {sT[0]} offen sc1", "ep", cond=True)
    a("s_mov_b64 exec, -1\nL_noep:")

    ACC = {0: 32, 1: 48, 2: 64, 3: 80, "X": 96, "Y": 32, "Z": 48}
    OWN = {0: 112, 1: 116, 2: 120, 3: 124, "X": 22, "Y": 32, "Z": 48}
    GST = {0: (sGQ, 0), 1: (sGQ, 1), 2: (sGQ, 2), 3: (sGQ, 3), "X": (sGP, 0), "Y": (sGP, 1), "Z": (sGS, 0)}
    BLK = [0, 1, 2, 3, "X", "Y", "Z"]
    GF = {(b, sg): HA + 12 * bi + 4 * (sg - 1) for bi, b in enumerate(BLK) for sg in (1, 2, 3)}
    for b in BLK: GF[(b, 0)] = OWN[b]
    ACC2 = {1: 64, 2: 80, 3: 96, 0: 224}
    RQ2 = vRQ
    vDW, SEL, HR, PF = "v21", 240, 248, [36, 40, 44, 52, 56, 60]
    sWDb = [sT[1], sT[2], sT[3], sT[4]]
    seq = []
    KS0 = cfg.get("ks0", 18)
    for b, ks in [(b, ks) for ks in range(KS0) for b in range(4)] + [(b, ks) for b in range(4) for ks in range(KS0, 32)]:
        e = dict(acc=ACC[b], b=HA + 4 * ks, first=ks == 0, vw=f"a{ks}" if b == 0 else None)
        if ks < 16: e["rd"] = (vRQ[b], 2048 * ks, vRQ[b], 2048 * ks + 512)
        else: e["w"] = ar(64 * b + 4 * (ks - 16))
        seq.append(e)
    lastof = {b: max(i for i, e in enumerate(seq) if e["acc"] == ACC[b]) for b in range(4)}
    for bi, b in enumerate("XY"):
        for ks in range(32):
            seq.append(dict(acc=ACC[b], rd=(12 + bi, 1024 * ks, 12 + bi, 1024 * ks + 256), b=HA + 4 * ks, first=ks == 0))
    for ks in range(32):
        seq.append(dict(acc=ACC["Z"], rd=(vRS[0], 512 * ks, vRS[1], 512 * ks), b=HA + 4 * ks, first=ks == 0))
    seq[160]["mark"] = ["e0"]; seq[192]["mark"] = ["e1"]
    N1 = len(seq)
    order = ([(b, 0) for b in (0, 1, 2, 3)] + [(b, sg) for b in (0, 1, 2, 3) for sg in (1, 2, 3)]
             + [(b, sg) for b in "XYZ" for sg in (0, 1, 2, 3)])
    def wd_rd(p, s):
        return (RQ2[s], 4096 * (p % 16), RQ2[s], 4096 * (p % 16) + 1024)
    for p, k in enumerate(order):
        for s in (1, 2, 3):
            e = dict(acc=ACC2[s], rd=wd_rd(p, s), b=GF[k], first=p == 0, bump=p == 16)
            if s == 1 and k[1] == 1: e["chk"] = k[0]
            if s == 1 and k[1] == 0: e["mark"] = [f"e{k[0]}"]
            if p == 0: e["mark"] = e.get("mark", []) + [{1: "e2", 2: "e3", 3: "eX"}[s]]
            seq.append(e)
    NF = len(seq)
    for p, k in enumerate(order):
        seq.append(dict(acc=ACC2[0], rd=wd_rd(p, 0), b=GF[k], first=False, bump=p == 16))
    seq[NF]["mark"] = ["init0"]
    PD = 5
    lds_idx = [i for i, e in enumerate(seq) if "rd" in e]
    for n, i in enumerate(lds_idx):
        seq[i]["ln"] = n
        seq[i]["w"] = vr(96 + 4 * (n % 6)) if i < 128 else ar(4 * (n % 8))
        seq[i]["dst"] = ("v", 96 + 4 * (n % 6)) if i < 128 else ("a", 4 * (n % 8))
    issued = [0]
    def issue_reads(i):
        while issued[0] < len(lds_idx) and lds_idx[issued[0]] <= i + PD:
            e = seq[lds_idx[issued[0]]]
            p, d = e["dst"]; v0, o0, v1, o1 = e["rd"]
            if e.get("bump"): a(f"v_add_u32 v{v0}, {16*4096}, v{v0}")
            a(f"ds_read_b64_tr_b16 {vr(d,2,p)}, v{v0} offset:{o0}\nds_read_b64_tr_b16 {vr(d+2,2,p)}, v{v1} offset:{o1}")
            issued[0] += 1
    fill, at, done, cur = [], {}, set(), [0]
    vq, backlog = [], [0]
    def when(i, fn): at.setdefault(i, []).append(fn)
    def lines(txt): return [(cost(l.strip()), l.strip()) for l in txt.strip().split("\n")]
    def mark(m): return [(0, lambda: done.add(m))]
    def pop():
        c, it = fill.pop(0)
        it() if callable(it) else a(it)
    def vput(earliest, deadline, pipe, fn, key=None): vq.append([deadline, len(vq) + 1000 * cur[0], earliest, pipe, fn, key])
    def vrun(it):
        vq.remove(it); it[4](); backlog[0] += it[3]
        if cfg.get("verbose"): print(f"  i={cur[0]} vmem {it[5]} backlog={backlog[0]}", file=sys.stderr)
    def vforce(key):
        for it in sorted(vq):
            if it[5] == key: vrun(it)
    def store(l, tag):
        def f():
            a.vm(l, tag); backlog[0] += cfg.get("c_st", 80)
        return (8, f)
    nwd = [0]
    def wd_dma():
        b, sg = order[nwd[0]]
        s, off = GST[b]
        if Stream.cur != "wd":
            a(f"s_lshl_b32 {sM0}, {sWID}, 10\ns_add_u32 m0, {sM0}, {4096*nwd[0]}")
            Stream.cur = "wd"
        a(f"s_lshl4_add_u32 {sSO}, {s[sg]}, {sWDb[off]}")
        a.vm(f"buffer_load_dwordx4 {vDW}, {srd('WD')}, {sSO} offen lds", "wd0" if nwd[0] < 16 else "wd1")
        a("s_add_u32 m0, m0, 4096")
        nwd[0] += 1
    def g_lines(b):
        s, off = GST[b]
        return [f"buffer_load_dwordx4 {vr(GF[(b,sg)])}, {vL16}, {srd('WS')}, {s[sg]} offen offset:{1024*off} sc1" for sg in (1, 2, 3)]
    D1, CL = cfg.get("d1", 22), cfg.get("c_ld", 108)
    chk_at = {e["chk"]: i for i, e in enumerate(seq) if "chk" in e}
    def g_queue(b):
        for n, l in enumerate(g_lines(b)):
            vput(max(cur[0] + D1, 193 + 3 * BLK.index(b) + n), chk_at[b] - 20, CL, lambda l=l: a.vm(l, f"g{b}"), f"g{b}")
    def epi(b):
        s, off = GST[b]
        return (epi_block(a, ACC[b], OWN[b])
                + [store(f"buffer_store_dwordx4 {vr(OWN[b])}, {vL16}, {srd('WS')}, {s[0]} offen offset:{1024*off} sc1", "gst")]
                + mark(f"e{b}") + [(0, lambda: g_queue(b))])
    for ks in range(APD, 32):
        vput(0, [i for i, e in enumerate(seq) if e.get("vw") == f"a{ks}"][0] - 30, cfg.get("c_a", CL), a_load, f"a{ks}")
    sSS = sT[7]
    a(f"s_lshl_b32 {sSS}, {sR}, 11\ns_add_u32 {sSS}, {sSS}, {SS_OFF}\nv_lshlrev_b32 v16, 2, v3\nv_lshl_add_u32 v16, v4, 10, v16")
    for c in range(8):
        vput(0, lastof[0] - 40, 40, lambda c=c: a.vm(f"buffer_load_dword v{120+c}, v16, {srd('WS')}, {sSS} offen offset:{128*c} sc1", "ss"), "ss")
    for _ in range(a.pair.left()):
        vput(0, 105, 150, a.pair, "pair")
    for st in (a.sg, a.su):
        for _ in range(st.left()):
            vput(0, 150, 300, st, "single")
    for p in range(28):
        vput(80 if p < 16 else 192, 200 if p < 16 else 250, 76, wd_dma, "wd0" if p < 16 else "wd1")
    when(1, lambda: fill.extend(lines(f"""
        v_lshlrev_b32 v26, 16, v{HA}
        v_lshlrev_b32 v27, 16, v{HA}
        v_permlane32_swap_b32 v26, v27
        v_sub_f32 v6, v6, v26
        """)))
    fill.extend(lines(f"""
        v_lshrrev_b32 v26, 4, {vL}
        v_and_b32 v27, 15, {vL}
        v_lshlrev_b32 v28, 2, v26
        v_xor_b32 v27, v27, v28
        v_lshlrev_b32 v27, 4, v27
        v_lshl_add_u32 {vDW}, v26, 10, v27
        s_mul_i32 {sT[0]}, {sR}, {GR}
        s_add_u32 {sT[0]}, {sT[0]}, {G_OFF}
        s_lshl_b32 {sT[0]}, {sT[0]}, 4
        s_lshl_b32 {sWDb[0]}, {sWID}, 12
        s_sub_u32 {sWDb[0]}, {sWDb[0]}, {sT[0]}
        s_and_b32 {sT[0]}, {sCB}, 3
        s_lshl_b32 {sT[0]}, {sT[0]}, 8
        s_add_u32 {sWDb[0]}, {sWDb[0]}, {sT[0]}
        s_add_u32 {sWDb[1]}, {sWDb[0]}, 16384
        s_add_u32 {sWDb[2]}, {sWDb[0]}, 32768
        s_add_u32 {sWDb[3]}, {sWDb[0]}, 49152
        """))
    when(63, lambda: (a("s_barrier"), fill.extend(lines(f"""
        v_bfe_u32 v26, {vL}, 2, 2
        v_lshlrev_b32 v8, 6, v26
        v_lshl_add_u32 v26, v4, 3, v26
        v_lshl_add_u32 v8, v26, 8, v8
        v_and_b32 v27, 24, v14
        v_and_b32 v28, 16, {vL}
        v_lshl_add_u32 v27, v28, 1, v27
        v_add_u32 v8, v8, v27
        s_lshr_b32 {sT[0]}, {sCB}, 2
        s_lshl_b32 {sT[0]}, {sT[0]}, 6
        v_xor_b32 v8, {sT[0]}, v8
        v_xor_b32 v9, 64, v8
        v_xor_b32 v10, 128, v8
        v_xor_b32 v11, 192, v8
        """))))
    def stats():
        vforce("ss")
        fill.insert(0, (4, lambda: a.wait("ss")))
        fill[1:1] = lines(f"""
        v_add_f32 v120, v120, v121
        v_add_f32 v122, v122, v123
        v_add_f32 v124, v124, v125
        v_add_f32 v126, v126, v127
        v_add_f32 v120, v120, v122
        v_add_f32 v124, v124, v126
        v_add_f32 v16, v120, v124
        v_mov_b32 v17, v16
        v_mov_b32 v26, {fl(1e-5)}
        v_permlane32_swap_b32 v16, v17
        v_add_f32 v16, v16, v17
        v_fmamk_f32 v17, v16, {fl(1/512)}, v26
        v_rsq_f32 v16, v17
        v_mul_f32 v16, {fl(-1.4426950408889634)}, v16
        """)
    when(lastof[0] - 4, stats)
    for b in range(4):
        when(lastof[b] + 2, lambda b=b: fill.extend(epi(b)))
    when(127, lambda: a.stamp("quad"))
    when(128 - PD - 1, lambda: (vforce("pair"), a.wait("pair"), a("s_barrier")))
    when(159, lambda: vforce("single"))
    when(192 - PD - 1, lambda: (a.wait("single"), a("s_barrier")))
    when(191, lambda: a("s_barrier"))
    when(N1 - PD - 1, lambda: (vforce("wd0"), a.wait("wd0"), a("s_barrier")))
    when(N1 + 48 - PD - 1, lambda: (vforce("wd1"), a.wait("wd1"), a("s_barrier")))
    when(160, lambda: fill.extend(epi("X")))
    when(192, lambda: fill.extend(epi("Y")))
    sOC = sT[5]
    def after_g1():
        a.stamp("g1end")
        fill.extend(epi("Z"))
        fill.extend(lines(f"""
        s_and_b32 {sT[0]}, {sCB}, 3
        s_lshr_b32 {sOC}, {sCB}, 2
        s_lshl2_add_u32 {sOC}, {sT[0]}, {sOC}
        s_lshl_b32 {sT[0]}, {sOC}, 11
        s_sub_u32 {sHC}, {sHC}, 32768
        s_add_u32 {sHC}, {sT[0]}, {sHC}
        """))
        def resq():
            for ks in range(2):
                vput(0, NF, CL, lambda ks=ks: a.vm(f"buffer_load_dwordx4 {vr(HR+4*ks)}, {vL16}, {srd('WS')}, {sHC} offen offset:{1024*ks} sc1", "res"), "res")
        fill.append((0, resq))
        sel = f"""
        s_lshl_b32 {sOC}, {sOC}, 6
        v_bfe_u32 v26, {vL}, 2, 1
        v_cmp_eq_u32 vcc, v26, v4
        v_and_b32 v26, 1, {vL}
        v_lshlrev_b32 v26, 4, v26
        v_lshlrev_b32 v26, v26, 0x3f80
        v_cndmask_b32 v26, 0, v26, vcc
        v_bfe_u32 v27, {vL}, 1, 1
        v_bfe_u32 v29, {vL}, 3, 2
        v_lshl_or_b32 v27, v29, 1, v27
        """.replace("v_lshlrev_b32 v26, v26, 0x3f80", "v_mov_b32 v27, 0x3f80\nv_lshlrev_b32 v26, v26, v27")
        grp = lines(sel)
        for d in range(8):
            grp += lines(f"v_cmp_eq_u32 s[30:31], {d}, v27\nv_cndmask_b32 v{SEL+d}, 0, v26, s[30:31]")
        fill.append((10, lambda: [a(l) for _, l in grp[1:4 + 4]]))
        fill.extend(grp[:1] + grp[8:])
    when(N1, after_g1)
    def init0():
        fill.extend(lines("\n".join(f"v_mov_b32 v{224+d}, v6" for d in range(16))))
        fill.extend(mark("init0"))
    when(NF - 14, init0)
    def send():
        a.stamp("fend")
        for s in (1, 2, 3):
            fill.extend(lines(f"s_xor_b32 {sT[0]}, {sCB}, {4*s}\ns_sub_i32 {sT[0]}, {sT[0]}, {sCB}\ns_mul_i32 {sT[0]}, {sT[0]}, 6144\n"
                              f"s_add_u32 {sT[0]}, {sT[0]}, {sPIN}\ns_add_u32 {sT[0]}, {sT[0]}, {2048*(s-1)}"))
            c = ACC2[s]
            for ks in range(2):
                fill.extend(lines("\n".join(f"v_cvt_pk_bf16_f32 v{c+8*ks+d}, v{c+8*ks+2*d}, v{c+8*ks+2*d+1}" for d in range(4))))
                fill.append(store(f"buffer_store_dwordx4 {vr(c+8*ks)}, {vL16}, {srd('WS')}, {sT[0]} offen offset:{1024*ks} sc1", "pst"))
    when(NF, send)

    CAP, THR, GAP = cfg.get("cap", 24), cfg.get("thr", 120), cfg.get("gap", 33)
    issue_reads(-1)
    waited = -1
    for i, e in enumerate(seq):
        cur[0] = i
        for m in e.get("mark", []):
            while m not in done: pop()
        if "chk" in e:
            b = e["chk"]
            vforce(f"g{b}")
            checked(a, f"g{b}", g_lines(b), [GF[(b, sg)] for sg in (1, 2, 3)])
        if e.get("vw"):
            vforce(e["vw"]); a.wait(e["vw"])
        if "ln" in e and e["ln"] > waited:
            waited = min(e["ln"] + 1, issued[0] - 1)
            a(f"s_waitcnt lgkmcnt({2*(issued[0]-1-waited)})")
        c = vr(e["acc"], 16)
        a(f"{MF32} {c}, {e['w']}, {vr(e['b'])}, {0 if e['first'] else c}")
        a.stamp(f"m{i}")
        for fn in at.pop(i, []): fn()
        issue_reads(i)
        backlog[0] = max(0, backlog[0] - GAP)
        el = sorted(it for it in vq if it[2] <= i)
        if el and backlog[0] <= THR: vrun(el[0])
        nxt = seq[i + 1] if i + 1 < len(seq) else {}
        reserve = (4 if nxt.get("ln", -1) > waited else 0) + (4 if nxt.get("vw") else 0)
        while fill and a.slots + fill[0][0] + reserve <= CAP: pop()
    while fill: pop()
    vforce("res")
    assert not at and not vq, (at.keys(), vq)
    a.stamp("mend")
    own = vr(ACC2[0], 16)
    a.wait("res")
    for ks in range(2):
        a(f"{MF32} {own}, {vr(SEL+4*ks)}, {vr(HR+4*ks)}, {own}")
    if cfg.get("p_wait", 1): a.wait("pst")
    pl = [f"buffer_load_dwordx4 {vr(PF[i])}, {vL16}, {srd('WS')}, {sPIN if i < 4 else sPIN2} offen offset:{1024*(i%4)} sc1" for i in range(6)]
    for l in pl: a.vm(l, "pp")
    a(f"v_lshl_add_u32 v5, v4, 4, v7")
    checked(a, "pp", pl, PF)
    a.stamp("pgot")
    for i in range(6):
        a(f"{MF32} {own}, {vr(SEL+4*(i&1))}, {vr(PF[i])}, {own}")
    for ks in range(2):
        for d in range(4):
            a(f"v_cvt_pk_bf16_f32 v{64+4*ks+d}, v{224+8*ks+2*d}, v{224+8*ks+2*d+1}")
        a.vm(f"buffer_store_dwordx4 {vr(64+4*ks)}, v5, {srd('OUT')}, {sOC} offen offset:{32*ks}{cfg.get('oflag', '')}", "ost")

def stamp_out(a):
    a("s_waitcnt vmcnt(0)")
    a.stamp("end")
    a("s_waitcnt lgkmcnt(0)")
    for i in range(16):
        a(f"v_mov_b32 v{4+i}, {f's{68+2*i}' if i < a.nst else 's100' if i == 15 else 0}")
    a(f"""
    s_lshl2_add_u32 {sT[0]}, s2, {sWID}
    s_lshl_b32 {sT[0]}, {sT[0]}, 6
    s_add_u32 {sT[0]}, {sT[0]}, {STAMP_OFF}
    v_mov_b32 v3, 0
    s_mov_b64 exec, 1
    """)
    for q in range(4):
        a(f"buffer_store_dwordx4 {vr(4+4*q)}, v3, {srd('WS')}, {sT[0]} offen offset:{16*q}")

def build(cfg):
    a = K(cfg)
    a.clr = Clears(a)
    prologue(a); phase_a(a); window1(a); phase_b(a); ffn(a)
    if cfg.get("stamps"): stamp_out(a)
    a("L_end:\ns_endpgm")
    for t in a.tail: a(t)
    a("L_last:\ns_endpgm")
    lines, added = hazard.fix(a.lines)
    print(f"{len(lines)} lines, {added} wait states added; stamps: {cfg.get('names')}", file=sys.stderr)
    head = open(f"cdna_kernels/{NAME}.s.ref").read().split("; Override launch")[0]
    kn = NAME + "_kernel"
    if cfg.get("aslist"):
        head += f"; @launch kernel={kn} grid=(256,1,1) block=(256,1,1) lds=163840\n"
    else:
        head += "; @launch grid=(256,1,1) block=(256,1,1) lds=163840\n"
    return head + HEAD + kernel_open(kn) + "\n".join(lines) + '\n.section .rodata,"a"\n' + descriptor(kn, 512, 102, 256)

if __name__ == "__main__":
    cfg = {}
    for kv in sys.argv[2:]:
        k, v = kv.split("=")
        cfg[k] = int(v) if v.lstrip("-").isdigit() else v
    open(sys.argv[1], "w").write(build(cfg))
```

```python
import struct, sys
from asmlib import *
import hazard

NAME = "sequential_preLN__spectral_fnet__swiglu_ffn__prompt"
U_OFF, MU_OLD, SS_OFF, F1_OFF, F2_OFF, EP_OFF = 0, 0x240000, 0x244000, 0x268000, 0x270000, 0x27F000
HC_OFF, G_OFF, STAMP_OFF, P_OFF, RP_OFF, WS_BYTES = 0x280000, 0x480000, 0xBC0000, 0xC00000, 0x1200000, 0x1380000
RF_OFF = F1_OFF + 0x3000
MU_OFF, F1_OFF = 0x220000, 0x230000
GR = 112 * 1024
SPIN = 4000

SRD = dict(X=4, WS=8, WG=12, WU=16, WD=20, OUT=24, TMP=28)
KOFF = dict(X=0, WG=48, WU=56, WD=64, OUT=72, WS=88)
SIZE = dict(X=2097152, WG=1835008, WU=1835008, WD=1835008, OUT=2097152, WS=WS_BYTES, TMP=1835008)
srd = lambda n: f"s[{SRD[n]}:{SRD[n]+3}]"
fl = lambda x: hex(struct.unpack("<I", struct.pack("<f", x))[0])
vr = lambda b, n=4, p="v": f"{p}[{b}:{b+n-1}]"
ar = lambda b, n=4: vr(b, n, "a")
MF16, MF32 = "v_mfma_f32_16x16x32_bf16", "v_mfma_f32_32x32x16_bf16"

sWID, sXCD, sJ, sRB, sCB, sTAG, sR = "s32", "s33", "s34", "s35", "s36", "s37", "s38"
sT = [f"s{39+i}" for i in range(9)]
sGQ = [f"s{48+i}" for i in range(4)]
sGP = [f"s{52+i}" for i in range(4)]
sRPS, sRPD, sRPF, sF2 = "s56", "s57", "s58", "s59"
sS2, sQ, sP, sWROW, sT1C, sPIN, sM0, sSO = "s60", "s61", "s62", "s63", "s64", "s65", "s66", "s67"
sPIN2, sWRM = "s3", "s101"
sPAIR, sUD, sMUD, sRBB = sGP[0], sGP[1], sGP[2], sGP[3]
sF2B = sGQ[3]
vL, vL16 = "v1", "v2"
NEG = 22
L_H1, L_S = 65536, 131072
L_RP = 98304
XP = 1040
LX = 163840 - 50176
LST = LX + 32 * XP
LH = LST + 512

VOP3 = ("v_fma_", "v_cvt_pk", "v_max3", "v_lshl_add", "v_lshl_or", "v_add3", "v_bfe", "v_alignbit", "v_fmamk", "v_perm_b32", "v_and_or", "v_or3")
def cost(t):
    if t.endswith(":"): return 0
    if t.startswith(hazard.TRANS): return 8
    if t.startswith("buffer_store_dwordx4"): return 20
    if t.startswith(VOP3) or (t.startswith("v_") and ("0x" in t or "s[" in t)): return 5
    return 4

class K(Asm):
    def __init__(self, cfg):
        super().__init__()
        self.cfg = cfg
        self.vmlog = []
        self.vmdone = -1
        self.vcc_busy = None
        self.nst = 0
        self.tail = []
        self.slots = 0
    def __call__(self, s=""):
        n = len(self.lines)
        super().__call__(s)
        for l in self.lines[n:]:
            t = l.strip()
            if t.startswith("v_mfma"): self.slots = 0
            else: self.slots += cost(t)
    def vm(self, ins, tag, cond=False):
        self(ins)
        self.vmlog.append((tag, cond))
    def wait(self, *tags):
        last = max(i for i, (t, _) in enumerate(self.vmlog) if t in tags)
        if last <= self.vmdone: return
        n = sum(1 for (t, c) in self.vmlog[last + 1:] if not c)
        self(f"s_waitcnt vmcnt({min(n, 63)})")
        self.vmdone = last
    def stamp(self, name):
        only = self.cfg.get("only")
        if only and name not in ["start", "end"] + str(only).split(","): return
        if not only and (name[0] == "_" or name[0] == "m" and name[1:].isdigit()): return
        if self.cfg.get("stamps") and name not in str(self.cfg.get("nostamp", "")).split(","):
            self(f"{'s_memtime' if self.cfg.get('cyc') else 's_memrealtime'} s[{68+2*self.nst}:{69+2*self.nst}]")
            self.cfg.setdefault("names", []).append(name)
            self.nst += 1
            assert self.nst <= 15

def dma(a, voff, mat, tag, step_src):
    a.vm(f"buffer_load_dwordx4 {voff}, {srd(mat)}, {sSO} offen lds", tag)
    a(f"s_add_u32 m0, m0, 1024\ns_add_u32 {sSO}, {sSO}, {step_src}")

def dma_setup(a, rows, colshift, colbase, ldsshift, ldsbase):
    a(f"""
    s_lshl_b32 {sM0}, {sWID}, {ldsshift}
    s_add_u32 m0, {sM0}, {ldsbase}
    s_lshl_b32 {sSO}, {sCB}, {colshift}
    {f"s_lshl1_add_u32 {sSO}, {sWROW}, {sSO}" if rows == 128 else f"s_add_u32 {sSO}, {sSO}, {sWROW}"}
    s_add_u32 {sSO}, {sSO}, {colbase}
    """)

vDQ, vDQU = "v20", "v21"
vRQ = [8, 9, 10, 11]

def spin_flags(a, name, ld, cmp_lines):
    a(f"s_mov_b32 {sT[8]}, 0\nL_{name}:")
    a.vm(ld, name)
    a(f"s_add_u32 {sT[8]}, {sT[8]}, 1\ns_cmp_gt_u32 {sT[8]}, {SPIN}\ns_waitcnt vmcnt(0)\ns_cbranch_scc1 L_{name}_ok")
    a(cmp_lines)
    a(f"s_cbranch_vccnz L_{name}\nL_{name}_ok:")
    a.vmdone = len(a.vmlog) - 1

def warm(a, site):
    plan = dict(kv.split(":") for kv in str(a.cfg.get("warm", "q:x7")).split(","))
    for what, at in plan.items():
        if at != site: continue
        if what in "pqs":
            lg, base, mul = {"q": (2, 0, 512), "p": (1, 2048, 256), "s": (0, 3072, 128)}[what]
            a(f"""
            s_lshr_b32 {sM0}, {sXCD}, 1
            s_mul_i32 {sM0}, {sM0}, {mul}
            s_add_u32 {sM0}, {sM0}, {sWRM}
            v_lshrrev_b32 v30, {lg}, {vL}
            v_mul_u32_u24 v30, 3584, v30
            v_and_b32 v31, {(1 << lg) - 1}, {vL}
            v_lshl_add_u32 v30, v31, 7, v30
            s_mov_b64 exec, {hex((1 << (8 << lg)) - 1)}
            """.replace("s_mov_b64 exec, 0xffffffff", "s_mov_b32 exec_hi, 0"))
            a.vm(f"buffer_load_dword v0, v30, {srd('TMP')}, {sM0} offen offset:{base}", "warm")
            a("s_mov_b64 exec, -1")
        else:
            a(f"""
            s_lshl2_add_u32 {sF2}, {sJ}, {sWID}
            s_cmp_lt_u32 {sF2}, 64
            s_cselect_b32 {sM0}, 0, 192
            s_cselect_b32 {sPIN}, 64, 48
            s_lshr_b32 {sPIN2}, {sXCD}, 1
            s_mul_i32 {sPIN2}, {sPIN2}, {sPIN}
            s_add_u32 {sPIN2}, {sPIN2}, {sM0}
            s_add_u32 {sPIN2}, {sPIN2}, {sF2}
            s_cmp_lt_u32 {sF2}, 112
            s_cselect_b32 {sPIN2}, {sPIN2}, 0x1000
            s_lshl_b32 {sPIN2}, {sPIN2}, 12
            v_lshlrev_b32 v77, 7, {vL}
            s_mov_b32 exec_hi, 0
            """)
            a.vm(f"buffer_load_dword v0, v77, {srd('WD')}, {sPIN2} offen", "warm")
            a("s_mov_b64 exec, -1")

class ScalarWarm:
    def __init__(self, a): self.a, self.i = a, 0
    def __call__(self, k):
        a = self.a
        if self.i == 0 and k:
            a(f"""
            s_lshl2_add_u32 s28, {sJ}, {sWID}
            s_min_u32 s28, s28, 111
            s_cmp_lt_u32 s28, 64
            s_cselect_b32 {sM0}, 0, 192
            s_cselect_b32 s30, 64, 48
            s_lshr_b32 s29, {sXCD}, 1
            s_mul_i32 s29, s29, s30
            s_add_u32 s29, s29, {sM0}
            s_add_u32 s29, s29, s28
            s_lshl_b32 s29, s29, 12
            s_add_u32 s28, s20, s29
            s_addc_u32 s29, s21, 0
            """)
        for _ in range(min(k, 32 - self.i)):
            a(f"s_load_dword s30, s[28:29], {128*self.i}")
            self.i += 1

def prologue(a):
    cfg = a.cfg
    a.stamp("start")
    if cfg.get("stamps"): a("s_mov_b32 s100, 0")
    a("s_cmp_ge_u32 s2, 256\ns_cbranch_scc1 L_end")
    for n in ("X", "WS", "WG", "WU", "WD", "OUT"):
        a(f"s_load_dwordx2 s[{SRD[n]}:{SRD[n]+1}], s[0:1], {KOFF[n]}")
    a(f"v_lshrrev_b32 v2, 6, v0\nv_and_b32 {vL}, 63, v0")
    if cfg.get("cpf", 1):
        a(f"""
        s_getpc_b64 s[28:29]
        L_pc:
        s_lshr_b32 {sJ}, s2, 3
        s_lshl_b32 {sT[2]}, {sJ}, 10
        v_lshl_add_u32 v8, v2, 1, {vL}
        v_lshl_add_u32 v8, v8, 7, {sT[2]}
        v_min_u32 v8, L_last-L_pc, v8
        v_mov_b32 v9, s29
        v_add_co_u32 v8, vcc, s28, v8
        v_addc_co_u32 v9, vcc, 0, v9, vcc
        s_mov_b64 exec, 3
        """)
        a.vm("global_load_dword v0, v[8:9], off", "warm")
        a("s_mov_b64 exec, -1")
    a(f"v_readfirstlane_b32 {sWID}, v2")
    for n in SRD:
        a(f"s_mov_b32 s{SRD[n]+2}, {SIZE[n]}\ns_mov_b32 s{SRD[n]+3}, 0x20000")
    a(f"""
    s_and_b32 {sXCD}, s2, 7
    s_lshr_b32 {sJ}, s2, 3
    s_lshr_b32 {sRBB}, {sJ}, 4
    s_lshl1_add_u32 {sRBB}, {sXCD}, {sRBB}
    s_sub_u32 {sS2}, 32, {sRBB}
    s_cmp_eq_u32 {sRBB}, 0
    s_cselect_b32 {sT1C}, 16, {sS2}
    s_bitcmp1_b32 {sJ}, 3
    s_cselect_b32 {sS2}, {sT1C}, {sRBB}
    s_and_b32 {sT[0]}, {sJ}, 4
    s_lshl3_add_u32 {sS2}, {sT[0]}, {sS2}
    s_lshl_b32 {sT[0]}, {sWID}, 19
    s_lshl_b32 {sT[1]}, {sS2}, 10
    s_add_u32 {sT[0]}, {sT[0]}, {sT[1]}
    s_add_u32 {sT[1]}, {sT[0]}, 0x40000
    v_lshlrev_b32 {vL16}, 4, {vL}
    v_and_b32 v3, 15, {vL}
    v_lshrrev_b32 v4, 4, {vL}
    v_and_b32 v5, 3, {vL}
    v_lshl_add_u32 v5, v4, 2, v5
    v_lshlrev_b32 v5, 4, v5
    v_lshrrev_b32 v6, 2, v3
    v_lshl_add_u32 v7, v6, 16, v5
    s_and_b32 {sQ}, {sJ}, 1
    s_bfe_u32 {sP}, {sJ}, 0x10001
    """)
    a("s_waitcnt lgkmcnt(0)")
    X = 64
    a.stamp("_ka")
    for i in range(8):
        a.vm(f"buffer_load_dwordx4 {vr(X+4*i)}, v7, {srd('X')}, {sT[i//4]} offen offset:{256*(i%4)}", f"x{i}")
    a(f"""
    s_add_u32 s44, s8, {EP_OFF}
    s_addc_u32 s45, s9, 0
    s_load_dword {sTAG}, s[44:45], 0
    s_and_b32 {sRB}, {sXCD}, 1
    s_lshl_b32 {sRB}, {sRB}, 3
    s_and_b32 {sT[0]}, {sJ}, 7
    s_or_b32 {sRB}, {sRB}, {sT[0]}
    s_lshr_b32 {sCB}, {sXCD}, 1
    s_lshl_b32 {sCB}, {sCB}, 2
    s_lshr_b32 {sT[0]}, {sJ}, 3
    s_or_b32 {sCB}, {sCB}, {sT[0]}
    s_lshl_b32 {sR}, {sRB}, 2
    s_add_u32 {sR}, {sR}, {sWID}
    s_mul_i32 {sWROW}, {sWID}, {64*3584}
    """)
    a.stamp("_xi")

def late_setup(a):
    cfg = a.cfg
    a(f"""
    s_cmp_eq_u32 {sQ}, 1
    s_cselect_b32 s28, s16, s12
    s_cselect_b32 s29, s17, s13
    s_lshr_b32 {sT[1]}, {sJ}, 1
    s_lshl2_add_u32 {sWRM}, {sT[1]}, {sWID}
    s_mul_i32 {sWRM}, {sWRM}, {8*3584}
    s_lshr_b32 {sT[0]}, {sJ}, 3
    s_mul_i32 {sT[0]}, {sT[0]}, 3
    s_add_u32 {sT[0]}, {sT[0]}, {sWID}
    s_sub_u32 {sT[0]}, {sT[0]}, 1
    s_bfe_u32 {sT[1]}, {sJ}, 0x20001
    s_lshl2_add_u32 {sT[1]}, {sXCD}, {sT[1]}
    s_mul_i32 {sRPS}, {sT[1]}, {16*3584}
    s_lshl_b32 {sT[2]}, {sT[0]}, 7
    s_add_u32 {sRPS}, {sRPS}, {sT[2]}
    s_add_u32 {sRPS}, {sRPS}, 2048
    s_add_u32 {sRPD}, {sT[2]}, {sT[1]}
    s_lshl2_add_u32 {sRPD}, {sRPD}, {sQ}
    s_lshl_b32 {sRPD}, {sRPD}, 8
    s_add_u32 {sRPD}, {sRPD}, {RP_OFF}
    s_lshl3_add_u32 {sRPF}, {sT[0]}, {sXCD}
    s_lshl_b32 {sRPF}, {sRPF}, 5
    s_and_b32 {sT[1]}, {sJ}, 7
    s_add_u32 {sRPF}, {sRPF}, {sT[1]}
    s_lshl_b32 {sRPF}, {sRPF}, 2
    s_add_u32 {sRPF}, {sRPF}, {RF_OFF}
    s_cmp_eq_u32 {sWID}, 0
    s_cselect_b32 {sRPS}, 0x40000000, {sRPS}
    s_cselect_b32 {sRPD}, 0x40000000, {sRPD}
    s_cselect_b32 {sRPF}, 0x40000000, {sRPF}
    s_lshl_b32 {sT[0]}, {sPAIR}, 6
    s_add_u32 {sT[0]}, {sT[0]}, {sS2}
    s_lshl_b32 {sT[0]}, {sT[0]}, 5
    s_add_u32 {sT[0]}, {sT[0]}, {sQ}
    s_lshl_b32 {sT[0]}, {sT[0]}, 2
    s_add_u32 {sT[5]}, {sT[0]}, {F1_OFF}
    s_cmp_eq_u32 {sPAIR}, 4
    s_cselect_b32 {sT[0]}, 2, 1
    v_cmp_gt_u32 s[46:47], {sT[0]}, {vL}
    v_lshlrev_b32 v25, 15, {vL}
    v_mov_b32 v8, 0x40000000
    v_cndmask_b32 v25, v8, v25, s[46:47]
    v_lshlrev_b32 v22, 2, {vL}
    v_add_u32 v23, {LST + 256}, v22
    v_and_b32 v24, 31, {vL}
    v_mul_u32_u24 v24, {XP}, v24
    v_add_u32 v24, {LX}, v24
    """)
    quad_addrs(a)

def gp_setup(a):
    a(f"s_mul_i32 {sT[0]}, {sR}, {GR}\ns_add_u32 {sT[0]}, {sT[0]}, {G_OFF}")
    for sg in range(4):
        a(f"""
        s_xor_b32 {sT[1]}, {sCB}, {sg}
        s_lshl_b32 {sT[1]}, {sT[1]}, 10
        s_lshl2_add_u32 {sGQ[sg]}, {sT[1]}, {sT[0]}
        s_sub_u32 {sGP[sg]}, {sGQ[sg]}, {sT[1]}
        s_add_u32 {sGP[sg]}, {sGP[sg]}, {64*1024}
        """)
    a(f"""
    s_lshl_b32 {sPIN}, {sR}, 4
    s_add_u32 {sPIN}, {sPIN}, {sCB}
    s_mul_i32 {sPIN}, {sPIN}, 6144
    s_add_u32 {sPIN}, {sPIN}, {P_OFF}
    s_add_u32 {sPIN2}, {sPIN}, 4096
    """)

def quad_addrs(a):
    a(f"""
    v_lshrrev_b32 v26, 3, {vL}
    v_and_b32 v27, 7, {vL}
    v_mul_u32_u24 v28, 3584, v26
    v_and_b32 v26, 2, v26
    v_xor_b32 v27, v27, v26
    v_lshl_add_u32 {vDQ}, v27, 4, v28
    v_xor_b32 {vDQU}, 64, {vDQ}
    """)

def w1_addrs(a):
    a(f"""
    v_bfe_u32 v26, {vL}, 2, 2
    v_lshrrev_b32 v27, 5, {vL}
    v_lshl_add_u32 v26, v27, 3, v26
    v_and_b32 v28, 1, {vL}
    v_bfe_u32 v29, {vL}, 1, 1
    v_lshl_or_b32 v28, v28, 1, v29
    v_lshlrev_b32 v28, 3, v28
    v_lshl_add_u32 v14, v26, 7, v28
    v_and_b32 v29, 2, v26
    v_lshl_add_u32 v14, v29, 4, v14
    """)

def w1_addrs2(a):
    a(f"""
    v_bfe_u32 v29, {vL}, 4, 1
    v_mul_u32_u24 v29, {32768 + 64}, v29
    v_add_u32 v8, v14, v29
    v_xor_b32 v9, 32, v8
    v_xor_b32 v10, 64, v8
    v_xor_b32 v11, 96, v8
    v_add_u32 v12, {L_S}, {vL16}
    """)

def repack_load(a):
    a(f"""
    s_lshl_b32 {sM0}, {sWID}, 11
    s_add_u32 m0, {sM0}, {L_RP}
    s_add_u32 {sM0}, {sRPS}, {8*3584 - 1024}
    """)
    a.vm(f"buffer_load_dwordx4 {vDQ}, {srd('TMP')}, {sRPS} offen lds", "rpl")
    a.vm(f"buffer_load_dwordx4 {vDQ}, {srd('TMP')}, {sM0} offen offset:1024 lds", "rpl")

def repack_store(a):
    a(f"""
    v_and_b32 v26, 16, {vL}
    v_lshlrev_b32 v27, 1, v26
    v_xor_b32 v27, v14, v27
    s_lshl_b32 {sM0}, {sWID}, 11
    s_add_u32 {sM0}, {sM0}, {L_RP}
    v_add_u32 v27, {sM0}, v27
    v_xor_b32 v28, 64, v27
    """)
    a(f"s_cmp_eq_u32 {sWID}, 0\ns_cbranch_scc1 L_norpl")
    keep = a.vmdone
    a.wait("rpl")
    a.vmdone = keep
    a("L_norpl:")
    a.stamp("_rpl")
    a(f"""
    ds_read_b64_tr_b16 {vr(64,2)}, v27
    ds_read_b64_tr_b16 {vr(66,2)}, v27 offset:512
    ds_read_b64_tr_b16 {vr(68,2)}, v28
    ds_read_b64_tr_b16 {vr(70,2)}, v28 offset:512
    v_and_b32 v72, 0x2f0, {vL16}
    v_lshl_add_u32 v72, v26, 11, v72
    v_mov_b32 v73, {sTAG}
    """)

def repack_out(a, site):
    if a.cfg.get("rp_at", "u1") == site:
        a(f"s_add_u32 {sM0}, {sRPD}, 65536\ns_waitcnt lgkmcnt(0)")
        a.vm(f"buffer_store_dwordx4 {vr(64)}, v72, {srd('WS')}, {sRPD} offen sc1", "rps")
        a.vm(f"buffer_store_dwordx4 {vr(68)}, v72, {srd('WS')}, {sM0} offen sc1", "rps")
    if a.cfg.get("rf_at", "g1") == site:
        a.wait("rps")
        a.vm(f"buffer_store_dword v73, v15, {srd('WS')}, {sRPF} offen sc1", "rfst")

def phase_a(a):
    X, T1, COS, NSIN, SIN, MRE, MIM = 64, 96, 128, 136, 144, 152, 160
    DRE, DIM = 168, 200
    ONE_E, ONE_O, GA, GB, SM = 232, 236, 240, 244, 248
    Stream.cur = None
    Q = lambda h, m: Stream(a, 8, (vDQ, vDQU)[m], ("WG", "WU")[m], f"q{h}", 8 * 3584, 64, 7, h * 256 * 3584, 13, h * L_H1 + m * 32768)
    a.q1g, a.q1u, a.q0g, a.q0u = Q(1, 0), Q(1, 1), Q(0, 0), Q(0, 1)
    a.qe = Chain(a.q0g, a.q0u, a.q1g)
    a.q = Chain(a.q0g, a.q0u, a.q1g, a.q1u)
    qa = [int(c) for c in str(a.cfg.get("qa", "0")).zfill(5)]
    a(f"""
    s_lshl2_add_u32 {sPAIR}, {sP}, {sWID}
    s_lshl1_add_u32 {sT[1]}, {sS2}, {sQ}
    s_lshl_b32 {sT[0]}, {sPAIR}, 8
    s_add_u32 {sT[0]}, {sT[0]}, {sT[1]}
    s_lshl_b32 {sUD}, {sT[0]}, 10
    s_add_u32 {sT[4]}, {sUD}, 0x20000
    s_lshr_b32 {sT[2]}, {sT[1]}, 4
    s_lshl3_add_u32 {sT[2]}, {sPAIR}, {sT[2]}
    s_and_b32 {sT[3]}, {sT[1]}, 15
    s_lshl_b32 {sT[2]}, {sT[2]}, 5
    s_add_u32 {sT[3]}, {sT[3]}, {sT[2]}
    s_lshl_b32 {sT[3]}, {sT[3]}, 10
    s_add_u32 {sT[3]}, {sT[3]}, {HC_OFF}
    s_and_b32 {sT[0]}, {sS2}, 31
    s_sub_u32 {sT[2]}, 32, {sT[0]}
    s_min_u32 {sT[0]}, {sT[0]}, {sT[2]}
    s_lshr_b32 {sT[0]}, {sT[0]}, 3
    s_min_u32 {sT[0]}, {sT[0]}, 1
    s_lshl2_add_u32 {sT[0]}, {sT[0]}, 2
    s_lshl4_add_u32 {sT[2]}, {sQ}, {sPAIR}
    s_lshl_b32 {sMUD}, {sS2}, 10
    s_add_u32 {sMUD}, {sMUD}, {MU_OFF}
    s_cmp_eq_u32 {sT[0]}, {sT[2]}
    s_cselect_b32 {sMUD}, {sMUD}, 0x40000000
    s_add_u32 {sT[2]}, {sUD}, {6 << 17}
    s_cmp_eq_u32 {sPAIR}, 5
    s_cselect_b32 {sT[2]}, {sT[2]}, {sMUD}
    v_mov_b32 v252, -1
    v_mov_b32 v253, -1
    v_mov_b32 v254, -1
    v_mov_b32 v255, -1
    """)
    a(f"s_mov_b32 {sGQ[0]}, {sT[4]}\ns_mov_b32 {sGQ[1]}, {sT[2]}\ns_mov_b32 {sGQ[2]}, {sT[3]}")
    cq = [sUD, sGQ[0], sGQ[1], sGQ[2]]
    cplan = str(a.cfg.get("cplan", "tttt")).zfill(4)
    def clr0(site):
        for c, so in zip(cplan, cq):
            if c == site: a.vm(f"buffer_store_dwordx4 v[252:255], {vL16}, {srd('WS')}, {so} offen sc1", "clr0")
    clr0("i")
    sub = K(a.cfg); late_setup(sub)
    late = [l.strip() for l in sub.lines]
    a("\n".join(late[:6])); late = late[6:]
    warm(a, "xi")
    rps = a.cfg.get("rpl_at", "x7")
    if rps not in ("x7", "B1"):
        a("\n".join(late[:24] + late[-7:])); late = late[24:-7]
    if rps == "xi": repack_load(a)
    a.stamp("_gp")
    a(f"""
    v_mul_u32_u24 v16, {XP}, v6
    s_mul_i32 {sT[0]}, {sWID}, {8*XP}
    s_add_u32 {sT[0]}, {sT[0]}, {LX}
    v_add3_u32 v16, v16, v5, {sT[0]}
    v_and_b32 v9, 1, {vL}
    v_cmp_eq_u32 vcc, 1, v9
    v_mov_b32 v10, 0x3f803f80
    v_cndmask_b32 v{ONE_O}, 0, v10, vcc
    v_xor_b32 v{ONE_E}, v10, v{ONE_O}
    """)
    for d in range(1, 4):
        a(f"v_mov_b32 v{ONE_O+d}, v{ONE_O}\nv_mov_b32 v{ONE_E+d}, v{ONE_E}")
    a(f"""
    s_lshl_b32 {sT[0]}, {sP}, 3
    v_add_u32 v10, {sT[0]}, v3
    v_cvt_f32_u32 v11, v10
    v_mul_f32 v11, {fl(-1/32)}, v11
    v_lshlrev_b32 v12, 3, v4
    v_cvt_f32_u32 v12, v12
    v_mul_f32 v12, v11, v12
    """)
    for j in range(8):
        a(f"v_cos_f32 v{MRE+j}, v12\nv_sin_f32 v{MIM+j}, v12")
        if j < 7: a("v_add_f32 v12, v12, v11")
    a.stamp("_M")
    a(f"""
    v_bfe_u32 v11, {vL}, 3, 1
    v_lshlrev_b32 v11, 17, v11
    v_and_b32 v12, 0x70, {vL16}
    v_lshl_add_u32 v18, v4, 7, v12
    s_lshl_b32 {sT[0]}, {sP}, 8
    v_add3_u32 v18, v18, v11, {sT[0]}
    v_xor_b32 v19, 512, v18
    """)
    for d in range(4):
        a(f"v_cvt_pk_bf16_f32 v{COS+d}, v{MRE+2*d}, v{MRE+2*d+1}\nv_cvt_pk_bf16_f32 v{NSIN+d}, v{MIM+2*d}, v{MIM+2*d+1}")
    a(f"s_mov_b32 {sT[2]}, 0x80000000\ns_mov_b32 {sT[3]}, 0x80008000\ns_mov_b32 {sT[4]}, 0x8000")
    for d in range(4):
        a(f"v_xor_b32 v{COS+4+d}, {sT[2]}, v{COS+d}\nv_xor_b32 v{NSIN+4+d}, {sT[2]}, v{NSIN+d}")
        a(f"v_xor_b32 v{SIN+d}, {sT[3]}, v{NSIN+d}\nv_xor_b32 v{SIN+4+d}, {sT[4]}, v{NSIN+d}")
    clr0("M")
    warm(a, "M")
    if rps == "M": repack_load(a)
    a.stamp("_T2")
    a(f"""
    s_lshl_b32 {sT[0]}, {sQ}, 3
    v_lshrrev_b32 v10, 1, v3
    v_add_u32 v10, {sT[0]}, v10
    v_cvt_f32_u32 v11, v10
    v_mul_f32 v11, {fl(1/512)}, v11
    s_lshl_b32 {sT[0]}, {sWID}, 3
    v_lshl_add_u32 v12, v4, 5, {sT[0]}
    v_cvt_f32_u32 v13, v12
    v_cmp_ne_u32 s[46:47], 0, v12
    v_cvt_f32_u32 v12, v9
    v_mul_f32 v12, {fl(0.25)}, v12
    v_fmac_f32 v12, v11, v13
    v_and_b32 v13, 1, v10
    v_lshlrev_b32 v14, 4, v13
    v_mul_lo_u32 v15, v13, {sT[3]}
    v_bfe_u32 v10, v10, 1, 1
    v_mul_lo_u32 v10, v10, {sT[3]}
    v_lshlrev_b32 v13, 15, v13
    v_xor_b32 v13, v13, v10
    """)
    for j in range(8):
        t = T1 + 4 * j
        a(f"v_cos_f32 v26, v12\nv_sin_f32 v27, v12")
        if j < 7: a("v_add_f32 v12, v12, v11")
        a(f"""
        v_cvt_pk_bf16_f32 v{t}, v26, v27
        v_alignbit_b32 v{t+1}, v{t}, v{t}, v14
        v_xor_b32 v{t+2}, v15, v{t}
        v_xor_b32 v{t+1}, v13, v{t+1}
        v_xor_b32 v{t+3}, v15, v{t+1}
        """)
    a.stamp("_T1")
    a(f"""
    v_cndmask_b32 v{T1}, 0, v{T1}, s[46:47]
    v_lshl_add_u32 v11, v4, 3, v6
    v_mul_u32_u24 v11, {XP}, v11
    v_and_b32 v12, 3, {vL}
    v_lshl_add_u32 v11, v12, 6, v11
    s_lshl_b32 {sT[0]}, {sWID}, 4
    s_add_u32 {sT[0]}, {sT[0]}, {LX}
    v_add_u32 v17, {sT[0]}, v11
    v_lshl_add_u32 v12, v9, 2, v4
    s_lshl_b32 {sT[0]}, {sWID}, 3
    v_add_u32 v12, {sT[0]}, v12
    s_mov_b32 {sT[0]}, {LST}
    v_lshl_add_u32 v13, v12, 1, {sT[0]}
    v_lshl_add_u32 v12, v12, 2, {sT[0]}
    v_lshl_add_u32 v14, v4, 4, {sT[0]}
    v_lshl_add_u32 v15, v4, 5, {sT[0]}
    s_lshl_b32 {sT[0]}, {sWID}, 8
    s_add_u32 {sT[0]}, {sT[0]}, {LH}
    v_lshlrev_b32 v10, 12, v4
    v_lshl_add_u32 v10, v3, 4, v10
    v_add_u32 v10, {sT[0]}, v10
    v_lshrrev_b32 v11, 3, v3
    v_lshlrev_b32 v11, 10, v11
    v_lshl_add_u32 v11, v4, 8, v11
    v_and_b32 v26, 7, {vL}
    v_lshl_add_u32 v11, v26, 5, v11
    s_lshl_b32 {sT[0]}, {sWID}, 11
    s_add_u32 {sT[0]}, {sT[0]}, {LH}
    v_add_u32 v11, {sT[0]}, v11
    """)
    if rps == "t": repack_load(a)
    warm(a, "t")
    clr0("t")
    a(f"s_waitcnt lgkmcnt(0)\ns_add_u32 {sTAG}, {sTAG}, 0x9e3779b9")
    a.stamp("tables")
    for i in range(8):
        a.wait(f"x{i}")
        if i == 0: a.stamp("x0")
        if i == 7: a.stamp("_x7")
        if i == 4: warm(a, "x4")
        g = GA if i < 4 else GB
        a(f"{MF16} {vr(g)}, {vr(X+4*i)}, {vr(X+4*i)}, {vr(g) if i % 4 else 0}")
        a(f"ds_write_b128 v16, {vr(X+4*i)} offset:{(i//4)*4*XP + 256*(i%4)}")
        a(f"{MF16} {vr(SM)}, {vr(X+4*i)}, {vr(ONE_E if i < 4 else ONE_O)}, {vr(SM) if i else 0}")
        clr0(str(i))
        k = -(-len(late) // (8 - i))
        a("\n".join(late[:k])); late = late[k:]
    if rps == "x7": repack_load(a)
    warm(a, "x7")
    for g, t in ((GA, 26), (GB, 27)):
        a(f"v_mov_b32_dpp v{t}, v{g} quad_perm:[0,0,0,0] row_mask:0xf bank_mask:0xf")
    for c in range(1, 4):
        for g, t in ((GA, 26), (GB, 27)):
            a(f"v_add_f32_dpp v{t}, v{g+c}, v{t} quad_perm:[{c},{c},{c},{c}] row_mask:0xf bank_mask:0xf")
        a(f"v_add_f32 v{SM}, v{SM}, v{SM+c}")
    a(f"""
    v_cndmask_b32 v27, v26, v27, vcc
    v_mul_f32 v26, {fl(1/512)}, v{SM}
    v_mul_f32 v27, {fl(1/512)}, v27
    v_fma_f32 v27, -v26, v26, v27
    v_max_f32 v27, 0, v27
    v_add_f32 v27, {fl(1e-5)}, v27
    v_rsq_f32 v27, v27
    v_cvt_pk_bf16_f32 v28, -v26, -v26
    v_lshlrev_b32 v29, 16, v28
    v_add_f32 v29, v29, v26
    v_cvt_pk_bf16_f32 v29, -v29, -v29
    s_mov_b32 exec_lo, 0x00300003
    s_mov_b32 exec_hi, 0x30000300
    ds_write_b32 v12, v27
    ds_write_b16 v13, v28 offset:128
    ds_write_b16 v13, v29 offset:192
    ds_write_b32 v12, v26 offset:256
    s_mov_b64 exec, -1
    """)
    a.qe(qa[0])
    FB = a.cfg.get("fb", 2)
    f1s = lambda: a.vm(f"buffer_store_dword v30, v25, {srd('WS')}, {sT[5]} offen sc1", "f1st")
    if FB == 1:
        a(f"v_mov_b32 v30, {sTAG}"); a.wait("clr0")
    a("s_waitcnt lgkmcnt(0)\ns_barrier")
    a.stamp("B1")
    a(f"""
    ds_read_b128 {vr(32)}, v15
    ds_read_b128 {vr(36)}, v15 offset:16
    ds_read_b128 {vr(40)}, v14 offset:128
    ds_read_b128 {vr(44)}, v14 offset:192
    """)
    def trread(i):
        vv, qq = i // 4, i % 4
        a(f"ds_read_b64_tr_b16 {vr(X+4*i,2)}, v17 offset:{8*vv + 256*qq}")
        a(f"ds_read_b64_tr_b16 {vr(X+4*i+2,2)}, v17 offset:{8*vv + 256*qq + 4*XP}")
    for i in range(5): trread(i)
    if FB == 1: f1s()
    if rps == "B1": repack_load(a)
    warm(a, "B1")
    a.qe(qa[1])
    BRE, BIM, CRE, CIM = 48, 52, 56, 60
    a("s_waitcnt lgkmcnt(12)")
    for j in range(8):
        a(f"v_mul_f32 v{MRE+j}, v{MRE+j}, v{32+j}")
    for d in range(4):
        a(f"v_cvt_pk_bf16_f32 v{BRE+d}, v{MRE+2*d}, v{MRE+2*d+1}")
    a("s_waitcnt lgkmcnt(8)")
    for i in range(5, 8): trread(i)
    a(f"{MF16} {vr(CRE)}, {vr(40)}, {vr(BRE)}, 0")
    for j in range(4): a(f"v_mul_f32 v{MIM+j}, v{MIM+j}, v{32+j}")
    a(f"{MF16} {vr(CRE)}, {vr(44)}, {vr(BRE)}, {vr(CRE)}")
    for j in range(4, 8): a(f"v_mul_f32 v{MIM+j}, v{MIM+j}, v{32+j}")
    for i in range(4):
        a(f"s_waitcnt lgkmcnt({14-2*i})")
        a(f"{MF16} {vr(DRE+4*i)}, {vr(X+4*i)}, {vr(BRE)}, {vr(CRE)}")
        a(f"v_cvt_pk_bf16_f32 v{BIM+i}, v{MIM+2*i}, v{MIM+2*i+1}")
    a(f"{MF16} {vr(CIM)}, {vr(40)}, {vr(BIM)}, 0\n{MF16} {vr(CIM)}, {vr(44)}, {vr(BIM)}, {vr(CIM)}")
    for i in range(4):
        a(f"{MF16} {vr(DIM+4*i)}, {vr(X+4*i)}, {vr(BIM)}, {vr(CIM)}")
    a.qe(qa[2])
    if FB == 3:
        a(f"v_mov_b32 v30, {sTAG}"); a.wait("clr0"); a("s_barrier"); f1s()
    a("s_waitcnt lgkmcnt(0)")
    for i in range(4, 8):
        a(f"{MF16} {vr(DRE+4*i)}, {vr(X+4*i)}, {vr(BRE)}, {vr(CRE)}")
    PA = 64
    def pack(j):
        vv, u = j // 4, j % 4
        return [f"v_cvt_pk_bf16_f32 v{PA+4*j+qq}, v{DRE+4*(4*vv+qq)+u}, v{DIM+4*(4*vv+qq)+u}" for qq in range(4)]
    for i in range(4, 8):
        a(f"{MF16} {vr(DIM+4*i)}, {vr(X+4*i)}, {vr(BIM)}, {vr(CIM)}")
        a("\n".join(pack(i - 4)))
    EE = [152, 156, 160, 164, 232, 236, 240, 244]
    for j in range(4):
        a(f"{MF16} {vr(EE[j])}, {vr(PA+4*j)}, {vr(T1+4*j)}, 0")
        a("\n".join(pack(4 + j)))
    for j in range(4, 8):
        a(f"{MF16} {vr(EE[j])}, {vr(PA+4*j)}, {vr(T1+4*j)}, 0")
    a.qe(qa[3])
    if FB == 4:
        a(f"v_mov_b32 v30, {sTAG}"); a.wait("clr0"); a("s_barrier"); f1s()
    for r in range(4):
        for d in range(4):
            a(f"v_cvt_pk_bf16_f32 v{32+4*r+d}, v{EE[2*d]+r}, v{EE[2*d+1]+r}")
        a(f"ds_write_b128 v10, {vr(32+4*r)} offset:{r*1024}")
    a.qe(qa[4])
    a(f"""
    ds_read_b32 v23, v23
    ds_read_u16 v24, v24
    v_cmp_gt_u32 vcc, 32, {vL}
    s_cmp_eq_u32 {sPAIR}, 4
    v_mov_b32 v30, {sTAG}
    """)
    a.wait("clr0")
    if a.cfg.get("rpl_early", 0): a.wait("rpl")
    a("s_waitcnt lgkmcnt(0)\ns_barrier")
    a.stamp("B2")
    def h2(o, A0, D0):
        return [f"{MF16} {vr(D0)}, {vr(COS+o)}, {vr(A0)}, 0", f"{MF16} {vr(D0+4)}, {vr(NSIN+o)}, {vr(A0)}, 0",
                f"{MF16} {vr(D0)}, {vr(SIN+o)}, {vr(A0+4)}, {vr(D0)}", f"{MF16} {vr(D0+4)}, {vr(COS+o)}, {vr(A0+4)}, {vr(D0+4)}"]
    def out(D0, P0, eb, so):
        return [f"v_cvt_pk_bf16_f32 v{P0+r}, v{D0+r}, v{D0+4+r}" for r in range(4)] + \
               [f"buffer_store_dwordx4 {vr(P0)}, v{18+eb}, {srd('WS')}, {so} offen sc1"]
    a(f"ds_read_b128 {vr(64)}, v11\nds_read_b128 {vr(68)}, v11 offset:16")
    if FB == 2: f1s()
    a("s_cbranch_scc1 L_a_extra\nL_a_main:")
    a(f"v_lshlrev_b32 v24, 16, v24\nv_cndmask_b32 v23, v24, v23, vcc")
    a.vm(f"buffer_store_dword v23, v22, {srd('WS')}, {sMUD} offen sc1", "ust")
    m0, m1 = h2(0, 64, 32), h2(4, 64, 40)
    a("s_waitcnt lgkmcnt(1)\n" + "\n".join(m0[:2]) + "\ns_waitcnt lgkmcnt(0)\n" + "\n".join(m0[2:] + m1))
    for eb in range(2):
        o = out(32 + 8 * eb, 48 + 4 * eb, eb, sUD)
        a("\n".join(o[:4])); a.vm(o[4], "ust")
    t = ["L_a_extra:", f"ds_read_b128 {vr(72)}, v11 offset:8192", f"ds_read_b128 {vr(76)}, v11 offset:8208",
         f"s_add_u32 {sT[0]}, {sUD}, {8 << 17}", "s_waitcnt lgkmcnt(0)"] + h2(0, 72, 168) + h2(4, 72, 176) + ["s_mov_b32 exec_lo, 0x00ff00ff", "s_mov_b32 exec_hi, 0x00ff00ff"]
    t += out(168, 184, 0, sT[0]) + out(176, 188, 1, sT[0]) + ["s_mov_b64 exec, -1", "s_branch L_a_main"]
    a.tail0 = "\n".join(t)
    a.stamp("ust")

FM, UU, ACCB, XX = 96, 128, 32, 160
HA = 128
LE = L_S + 16384

class Stream:
    cur = None
    def __init__(self, a, n, v, mat, tag, step, rows, colshift, colbase, ldsshift, ldsbase):
        self.a, self.n, self.i = a, n, 0
        self.p = (v, mat, tag, step, rows, colshift, colbase, ldsshift, ldsbase)
    def __call__(self, k=1):
        v, mat, tag, step, rows, cs, cb, ls, lb = self.p
        for _ in range(min(k, self.n - self.i)):
            a = self.a
            if Stream.cur is not self:
                dma_setup(a, rows, cs, cb + step * self.i, ls, lb + 1024 * self.i)
                Stream.cur = self; self.k = 0
            elif self.k == 4:
                a(f"s_add_u32 m0, m0, 4096\ns_add_u32 {sSO}, {sSO}, {step + 3072}"); self.k = 0
            else:
                a(f"s_add_u32 {sSO}, {sSO}, {step - 1024}")
            a.vm(f"buffer_load_dwordx4 {v}, {srd(mat)}, {sSO} offen offset:{1024*self.k} lds", tag)
            self.k += 1
            self.i += 1
    def left(self): return self.n - self.i

class Chain:
    def __init__(self, *st): self.st = st
    def __call__(self, k=1):
        for _ in range(k):
            for x in self.st:
                if x.left():
                    x(); break
    def left(self): return sum(x.left() for x in self.st)

def mix(a, lines, every, st):
    for n, l in enumerate(x.strip() for x in lines.strip().split("\n")):
        a(l)
        if n % every == every - 1 and not l.startswith(("s_cmp", "s_bitcmp", "s_cselect")): st()

def window1(a):
    cfg = a.cfg
    w1_addrs(a)
    repack_store(a)
    sw = ScalarWarm(a)
    nop = lambda: None
    mix(a, f"""
    s_cmp_lt_u32 {sWID}, 2
    s_cselect_b32 {sT1C}, {sRBB}, {sT1C}
    s_and_b32 {sT[6]}, {sWID}, 1
    s_lshl_b32 {sT[0]}, {sT[6]}, 10
    s_add_u32 {sT[0]}, {sT[0]}, {sT1C}
    v_and_b32 v3, 31, {vL}
    v_lshrrev_b32 v4, 5, {vL}
    v_lshl_add_u32 v5, v3, 5, {sT[0]}
    s_lshl_b32 {sT[7]}, {sT[0]}, 10
    s_cmp_gt_u32 {sT1C}, 16
    s_cselect_b32 {sT[1]}, 0x80000000, 0
    s_cselect_b32 {sT[2]}, {sRBB}, {sT1C}
    s_cselect_b32 {sT[4]}, -1, 0
    s_or_b32 {sT[1]}, {sT[1]}, {fl(1/2048)}
    v_cvt_f32_u32 v26, v5
    v_mul_f32 v26, {sT[1]}, v26
    s_lshl_b32 {sT[1]}, {sT[6]}, 4
    v_lshl_add_u32 v27, v4, 5, {sT[1]}
    v_xor_b32 v25, 16, v27
    v_cvt_f32_u32 v27, v27
    v_cvt_f32_u32 v25, v25
    v_mul_f32 v27, v26, v27
    v_lshrrev_b32 v17, 2, {vL}
    v_bfe_u32 v18, {vL}, 4, 2
    v_xor_b32 v18, v18, {vL}
    v_and_b32 v18, 3, v18
    v_lshlrev_b32 v18, 5, v18
    v_lshl_add_u32 v76, v17, 15, v18
    s_bfe_u32 {sT[0]}, {sJ}, 0x30001
    s_lshl3_add_u32 {sT[3]}, {sT[0]}, {sQ}
    s_lshl4_add_u32 {sT[0]}, {sT[3]}, {sT[7]}
    s_add_u32 {sT[1]}, {sT[0]}, {16*32768 - 1024}
    s_lshl_b32 {sT[7]}, {sT[3]}, 3
    v_and_b32 v28, 7, {vL}
    v_lshlrev_b32 v28, 7, v28
    v_and_b32 v29, 56, {vL}
    v_lshrrev_b32 v29, 1, v29
    v_add_u32 v24, v28, v29
    v_and_b32 v28, 15, {vL}
    v_and_b32 v29, 16, {vL}
    v_lshl_add_u32 v28, v29, 1, v28
    v_lshl_add_u32 v28, {sT[6]}, 4, v28
    v_and_b32 v29, 63, v5
    v_cmp_gt_u32 vcc, 32, {vL}
    v_cndmask_b32 v19, v29, v28, vcc
    v_lshlrev_b32 v19, 7, v19
    s_lshr_b32 {sT[3]}, {sT[2]}, 1
    s_lshl_b32 {sT[3]}, {sT[3]}, 13
    s_add_u32 {sT[3]}, {sT[3]}, {F1_OFF}
    s_lshl2_add_u32 {sT[2]}, {sT[2]}, {sT[6]}
    s_lshl_b32 {sUD}, {sT[2]}, 15
    s_mov_b32 {sMUD}, {MU_OFF}
    """, 99, nop)
    repack_out(a, "u1")
    a(f"s_waitcnt lgkmcnt(0)\ns_barrier\ns_lshl_b32 {sM0}, {sWID}, 12\ns_add_u32 m0, {sM0}, {LE}")
    a.stamp("_b3")
    warm(a, "u1")
    a.vm(f"buffer_load_dwordx4 v76, {srd('X')}, {sT[0]} offen lds", "xres")
    a.vm(f"buffer_load_dwordx4 v76, {srd('X')}, {sT[1]} offen offset:1024 lds", "xres")
    Stream.cur = None
    a.q(cfg.get("n0", 0))
    mix(a, f"""
    v_cmp_ne_u32 vcc, 0, {vL}
    v_mov_b32 v28, 0x40000000
    v_cndmask_b32 v15, 0, v28, vcc
    v_and_b32 v16, 63, v5
    v_lshlrev_b32 v16, 10, v16
    v_lshrrev_b32 v28, 6, v5
    v_lshl_add_u32 v16, v28, 2, v16
    v_and_b32 v28, 3, v3
    v_and_b32 v29, 4, v3
    v_lshl_or_b32 v28, v29, 2, v28
    v_and_b32 v29, 16, v3
    v_lshl_or_b32 v28, v29, 1, v28
    v_bfe_u32 v29, v3, 3, 1
    v_lshl_or_b32 v28, v29, 2, v28
    v_add_u32 v28, {sT[7]}, v28
    v_xor_b32 v28, {sT[4]}, v28
    v_subrev_u32 v28, {sT[4]}, v28
    v_and_b32 v17, 7, v28
    v_lshlrev_b32 v17, 4, v17
    v_bfe_u32 v29, v28, 3, 1
    v_lshl_add_u32 v17, v29, 10, v17
    v_bfe_u32 v29, v28, 4, 2
    v_lshl_add_u32 v17, v29, 2, v17
    v_bfe_u32 v29, v28, 6, 3
    v_lshl_add_u32 v17, v29, 7, v17
    v_lshl_add_u32 v17, v4, 16, v17
    v_add_u32 v18, 4096, v17
    """, 99, nop)
    def fm(lo, hi, st):
        for d in range(lo, hi):
            a(f"v_cos_f32 v28, v27\nv_sin_f32 v29, v27")
            a("v_mul_f32 v27, v26, v25" if d == 15 else "v_add_f32 v27, v27, v26")
            a(f"v_cvt_pk_bf16_f32 v{FM+d}, v28, v29")
            if d % cfg.get("fm_step", 2) == 0: st()
    n1, n2 = cfg.get("fm1", 8), cfg.get("fm2", 32)
    fm(0, n1, nop)
    f1l = f"buffer_load_dwordx2 v[22:23], v19, {srd('WS')}, {sT[3]} offen sc1"
    a.vm(f1l, "p1")
    a.stamp("_adr")
    a.q(cfg.get("n1", 4))
    fm(n1, n2, nop)
    a.sw = sw
    a.fm_rest = lambda: fm(n2, 32, lambda: None)
    a.stamp("poll1")
    flag_check(a, "p1", [f1l], f"v_xor_b32 v22, {sTAG}, v22\nv_xor_b32 v23, {sTAG}, v23\nv_or_b32 v22, v22, v23\nv_cmp_ne_u32 vcc, 0, v22")
    a.stamp("got1")

def phase_b(a):
    cfg = a.cfg
    ul = []
    for kq in range(4):
        ul += [f"s_add_u32 {sM0}, {sUD}, {8192*kq}"]
        ul += [f"buffer_load_dword v{UU+4*kq+dd}, v{17+dd//2}, {srd('WS')}, {sM0} offen offset:{2048*(dd&1)} sc1" for dd in range(4)]
    ul += [f"buffer_load_dword v7, v16, {srd('WS')}, {sMUD} offen sc1"]
    sub = K(cfg); w1_addrs2(sub)
    oth = [l.strip() for l in sub.lines] if cfg.get("fm2", 32) == 32 else []
    for l in ul:
        a.vm(l, "uu") if l.startswith("buffer") else a(l)
        if oth: a(oth.pop(0))
    f0l = f"buffer_load_dwordx2 v[22:23], v19, {srd('WS')}, {sT[3]} offen sc1"
    a(f"s_lshr_b32 {sT[3]}, {sRB}, 1\ns_lshl_b32 {sT[3]}, {sT[3]}, 13\ns_add_u32 {sT[3]}, {sT[3]}, {F1_OFF}")
    a.vm(f0l, "p0")
    a.fm_rest()
    if cfg.get("fm2", 32) != 32: w1_addrs2(a)
    a.stamp("_ui")
    a.wait("xres")
    a(f"""
    s_lshl_b32 {sT[2]}, {sWID}, 12
    s_add_u32 {sT[0]}, {sT[2]}, {LE}
    v_bfe_u32 v28, v3, 2, 2
    v_xor_b32 v28, v28, v4
    v_lshlrev_b32 v28, 4, v28
    v_lshl_add_u32 v28, v3, 6, v28
    v_add_u32 v28, {sT[0]}, v28
    v_xor_b32 v29, 32, v28
    ds_read_b128 {vr(XX)}, v28
    ds_read_b128 {vr(XX+4)}, v29
    v_add_u32 v30, {sT[0]}, {vL16}
    v_xor_b32 v31, 4096, v30
    s_lshl2_add_u32 {sT[4]}, {sRBB}, {sWID}
    s_and_b32 {sT[5]}, {sJ}, 15
    s_lshl4_add_u32 {sT[0]}, {sT[4]}, {sT[5]}
    s_lshl_b32 {sT[1]}, {sT[0]}, 7
    s_add_u32 {sT[1]}, {sT[1]}, {SS_OFF}
    s_lshr_b32 {sF2B}, {sT[0]}, 2
    s_lshl_b32 {sF2B}, {sF2B}, 5
    s_and_b32 {sT[5]}, {sJ}, 3
    s_add_u32 {sF2B}, {sF2B}, {sT[5]}
    s_lshl_b32 {sF2B}, {sF2B}, 2
    s_add_u32 {sF2B}, {sF2B}, {F2_OFF}
    s_lshl_b32 {sT[0]}, {sT[4]}, 9
    s_add_u32 {sT[0]}, {sT[0]}, {sT[7]}
    s_lshl_b32 {sT[0]}, {sT[0]}, 6
    s_add_u32 {sT[0]}, {sT[0]}, {HC_OFF}
    v_lshl_add_u32 v74, v4, 9, {vL16}
    v_mov_b32 v26, 0
    v_lshlrev_b32 v75, 2, {vL}
    """)
    repack_out(a, "g1")
    warm(a, "b1")
    a("s_waitcnt lgkmcnt(0)")
    for d in range(8):
        a(f"v_lshlrev_b32 v{ACCB+2*d}, 16, v{XX+d}\nv_and_b32 v{ACCB+2*d+1}, 0xffff0000, v{XX+d}")
    a.q(cfg.get("n2", 4))
    a.stamp("_pre")
    checked(a, "uu", ul, list(range(UU, UU + 16)) + [7])
    a.stamp("_u3")
    a.q(cfg.get("n3", 4))
    for kq in range(4):
        a(f"ds_write_b128 v30, {vr(UU+4*kq)} offset:{1024*kq}")
        for d in range(4 * kq, 4 * kq + 4): a(f"v_sub_f32 v{ACCB+d}, v{ACCB+d}, v7")
    a(f"{MF32} {vr(ACCB,16)}, {vr(UU)}, {vr(FM)}, {vr(ACCB,16)}")
    flag_check(a, "p0", [f0l], f"v_xor_b32 v22, {sTAG}, v22\nv_xor_b32 v23, {sTAG}, v23\nv_or_b32 v22, v22, v23\nv_cmp_ne_u32 vcc, 0, v22")
    a("s_waitcnt lgkmcnt(0)\ns_barrier")
    a.stamp("_bx")
    for kq in range(4):
        a(f"ds_read_b128 {vr(UU+16+4*kq)}, v31 offset:{1024*kq}")
    for kq in range(1, 8):
        if kq >= 4: a(f"s_waitcnt lgkmcnt({7-kq})")
        a(f"{MF32} {vr(ACCB,16)}, {vr(UU+4*kq)}, {vr(FM+4*kq)}, {vr(ACCB,16)}")
        if kq <= cfg.get("n4", 7): a.q()
    a(f"""
    s_mul_i32 {sRPS}, {sCB}, 3
    s_lshr_b32 {sT[4]}, {sRPS}, 2
    s_add_u32 {sT[5]}, {sRPS}, 2
    s_lshr_b32 {sT[5]}, {sT[5]}, 2
    s_lshl_b32 {sT[4]}, {sT[4]}, 10
    s_lshl_b32 {sT[5]}, {sT[5]}, 10
    s_add_u32 {sUD}, {sT[4]}, {RF_OFF}
    s_add_u32 {sMUD}, {sT[5]}, {RF_OFF}
    s_lshl_b32 {sRPS}, {sRPS}, 15
    s_add_u32 {sRPS}, {sRPS}, {sT[2]}
    s_add_u32 {sRPS}, {sRPS}, {RP_OFF}
    """)
    for ks in range(2):
        for d in range(4):
            a(f"v_cvt_pk_bf16_f32 v{48+4*ks+d}, v{ACCB+8*ks+2*d}, v{ACCB+8*ks+2*d+1}")
        a.vm(f"buffer_store_dwordx4 {vr(48+4*ks)}, v74, {srd('WS')}, {sT[0]} offen offset:{2048*ks} sc1", "hst")
    a.stamp("hst")
    repack_out(a, "h1")
    for d in range(8):
        a(f"v_dot2c_f32_bf16 v26, v{48+d}, v{48+d}")
    a("v_mov_b32 v27, v26\nv_permlane32_swap_b32 v26, v27\nv_add_f32 v26, v26, v27\ns_mov_b32 exec_hi, 0")
    a.vm(f"buffer_store_dword v26, v75, {srd('WS')}, {sT[1]} offen sc1", "hst")
    a(f"s_mov_b64 exec, -1\ns_mov_b32 {sRPD}, {sT[2]}")

def epi_block(a, acc, dst):
    o = []
    for j in range(0, 8, 2):
        t0, t1 = 26, 27
        g0, g1, u0, u1 = acc + j, acc + j + 1, acc + 8 + j, acc + 9 + j
        o += [f"v_mul_f32 v{t0}, v16, v{g0}", f"v_mul_f32 v{t1}, v16, v{g1}",
              f"v_exp_f32 v{t0}, v{t0}", f"v_exp_f32 v{t1}, v{t1}",
              f"v_mul_f32 v{u0}, v{g0}, v{u0}",
              f"v_fma_f32 v{t0}, v{t0}, v17, v17", f"v_fma_f32 v{t1}, v{t1}, v17, v17",
              f"v_rcp_f32 v{t0}, v{t0}", f"v_rcp_f32 v{t1}, v{t1}",
              f"v_mul_f32 v{u1}, v{g1}, v{u1}",
              f"v_mul_f32 v{u0}, v{u0}, v{t0}", f"v_mul_f32 v{u1}, v{u1}, v{t1}",
              f"v_cvt_pk_bf16_f32 v{dst + j//2}, v{u0}, v{u1}"]
    return [(cost(l), l) for l in o]

def slow_path(a, name, loads, chk):
    t = [f"L_{name}_slow:", f"s_mov_b32 {sT[8]}, 0", f"L_{name}_lp:", "s_nop 15"] + loads
    if a.cfg.get("stamps"): t += [f"s_or_b32 s100, s100, {1 << len(a.tail)}"]
    t += [f"s_add_u32 {sT[8]}, {sT[8]}, 1", "s_waitcnt vmcnt(0)", chk, f"s_cmp_gt_u32 {sT[8]}, {SPIN}", f"s_cbranch_scc1 L_{name}_ok",
          f"s_cbranch_vccnz L_{name}_lp", f"s_branch L_{name}_ok"]
    a.tail.append("\n".join(t))

def sentinel(regs, tmp):
    rs = list(regs)
    chk = [f"v_max3_u32 v{tmp}, v{rs[0]}, v{rs[1]}, v{rs[2]}"]
    for i in range(3, len(rs), 2):
        chk.append(f"v_max3_u32 v{tmp}, v{tmp}, v{rs[i]}, v{rs[min(i+1, len(rs)-1)]}")
    return "\n".join(chk + [f"v_cmp_eq_u32 vcc, -1, v{tmp}"])

def check1(a, name, chk):
    assert not a.vcc_busy, (a.vcc_busy, name)
    a.wait(name); a(chk); a.vcc_busy = name

def check2(a, name, loads, chk):
    a(f"s_cbranch_vccnz L_{name}_slow\nL_{name}_ok:")
    a.vcc_busy = None
    slow_path(a, name, loads, chk)

def flag_check(a, name, loads, chk):
    check1(a, name, chk); check2(a, name, loads, chk)

def checked(a, name, loads, regs, tmp=28):
    flag_check(a, name, loads, sentinel(regs, tmp))

class Repacked:
    def __init__(self, a): self.a, self.i = a, 0
    def __call__(self, k=1):
        a = self.a
        for _ in range(min(k, 24 - self.i)):
            g, n = self.i // 4, self.i % 4
            x, hh = g // 2, g % 2
            if n == 0 or Stream.cur is not self:
                a(f"s_add_u32 m0, {sRPD}, {(L_S, 0, 32768)[x] + 16384 * hh}\ns_add_u32 {sSO}, {sRPS}, {32768 * x + 16384 * hh}")
                Stream.cur = self
            a.vm(f"buffer_load_dwordx4 {vL16}, {srd('WS')}, {sSO} offen offset:{1024*n} sc1 lds", "rp" + "XYZ"[x])
            self.i += 1
    def left(self): return 24 - self.i

def ffn(a):
    cfg = a.cfg
    sHC = sT[6]
    a(f"""
    s_lshl_b32 {sT[0]}, {sR}, 9
    s_add_u32 {sT[3]}, {sT[0]}, {F2_OFF}
    s_lshr_b32 {sT[1]}, {sCB}, 2
    s_lshl_b32 {sT[1]}, {sT[1]}, 7
    s_and_b32 {sT[2]}, {sCB}, 3
    s_lshl2_add_u32 {sT[1]}, {sT[2]}, {sT[1]}
    s_add_u32 {sF2}, {sT[3]}, {sT[1]}
    s_mov_b32 {sRPF}, {sT[3]}
    v_mov_b32 v30, {sTAG}
    v_bfe_u32 v19, {vL}, 2, 2
    v_lshlrev_b32 v19, 7, v19
    v_and_b32 v26, 3, {vL}
    v_lshl_add_u32 v19, v26, 2, v19
    s_and_b32 {sT[1]}, {sT[1]}, 0x180
    v_lshl_add_u32 v18, v26, 2, {sT[1]}
    s_lshl_b32 {sHC}, {sR}, 15
    s_add_u32 {sHC}, {sHC}, {HC_OFF}
    """)
    HS = 1
    rp = Repacked(a)
    nA = [0]
    def a_load():
        ks = nA[0]
        a.vm(f"buffer_load_dwordx4 {vr(HA+4*ks)}, {vL16}, {srd('WS')}, {sHC} offen offset:{1024*(ks%4)} sc1", f"ag{ks//4}" if ks < 16 else f"a{ks}")
        if ks % 4 == 3: a(f"s_add_u32 {sHC}, {sHC}, 4096")
        nA[0] += 1
    APD = cfg.get("apd", 8)
    a(f"s_mov_b32 {sWRM}, {sHC}")
    fl_rf = [f"buffer_load_dword v{22+i}, v24, {srd('WS')}, {(sUD, sMUD)[i]} offen sc1" for i in range(2)]
    for l in fl_rf: a.vm(l, "rf")
    a.q(cfg.get("n5", 5))
    a.q0g(8); a.q0u(8)
    a.wait("hst")
    a.stamp("got2")
    a.vm(f"buffer_store_dword v30, v15, {srd('WS')}, {sF2B} offen sc1", "f2st")
    a.q(cfg.get("n6", 0))
    for _ in range(APD): a_load()
    a.stamp("_ai")
    flag_check(a, "rf", fl_rf, "v_xor_b32 v22, v30, v22\nv_xor_b32 v23, v30, v23\nv_or_b32 v22, v22, v23\nv_cmp_ne_u32 vcc, 0, v22")
    a.wait("q0")
    a("s_barrier")
    a.stamp("_b5")
    a(f"s_or_b32 {sT[0]}, s2, {sWID}\ns_cbranch_scc1 L_noep\ns_mov_b32 {sT[0]}, {EP_OFF}")
    a.vm(f"buffer_store_dword v30, v15, {srd('WS')}, {sT[0]} offen sc1", "ep", cond=True)
    a("L_noep:")

    ACC = {0: 32, 1: 48, 2: 64, 3: 80, "X": 96, "Y": 32, "Z": 48}
    OWN = {0: 112, 1: 116, 2: 120, 3: 124, "X": 22, "Y": 32, "Z": 48}
    GST = {0: (sGQ, 0), 1: (sGQ, 1), 2: (sGQ, 2), 3: (sGQ, 3), "X": (sGP, 0), "Y": (sGP, 1), "Z": (sGP, 2)}
    BLK = [0, 1, 2, 3, "X", "Y", "Z"]
    RING = cfg.get("ring", 44)
    GF = {(b, sg): ar(4 * RING + 12 * bi + 4 * (sg - 1)) for bi, b in enumerate(BLK[:5]) for sg in (1, 2, 3)}
    assert 4 * RING + 60 <= 256
    GV = {(b, sg): HA + 12 * bi + 4 * (sg - 1) for bi, b in enumerate("YZ") for sg in (1, 2, 3)}
    for k, v in GV.items(): GF[k] = vr(v)
    for b in BLK: GF[(b, 0)] = vr(OWN[b])
    ACC2 = {1: 64, 2: 80, 3: 96, 0: 224}
    RQ2 = vRQ
    vDW, vTG, SEL, HR, PF = "v13", "v21", 240, 248, 160
    sWDb = [sT[1], sT[2], sT[3], sT[4]]
    seq = []
    KS0 = cfg.get("ks0", 22)
    for b, ks in [(b, ks) for ks in range(KS0) for b in range(4)] + [(b, ks) for b in range(4) for ks in range(KS0, 32)]:
        e = dict(acc=ACC[b], b=vr(HA + 4 * ks), first=ks == 0, vw=ks if b == 0 else None,
                 rd=(vRQ[b], 2048 * (ks % 16), vRQ[b], 2048 * (ks % 16) + 512))
        if ks == 16: e["bump"] = L_H1
        seq.append(e)
    lastof = {b: max(i for i, e in enumerate(seq) if e["acc"] == ACC[b]) for b in range(4)}
    for b, v, o in (("X", 12, 0), ("Y", 2, 0), ("Z", 2, 32768)):
        for ks in range(32):
            seq.append(dict(acc=ACC[b], rd=(v, o + 1024 * ks), b=vr(HA + 4 * ks), first=ks == 0))
    seq[160]["mark"] = ["e0"]; seq[192]["mark"] = ["e1"]
    N1 = len(seq)
    order = ([(b, 0) for b in (0, 1, 2, 3)] + [(b, sg) for b in (0, 1, 2, 3) for sg in (1, 2, 3)]
             + [(b, sg) for b in "XYZ" for sg in (0, 1, 2, 3)])
    H, PS = cfg.get("hoist", 0), cfg.get("ps", 16)
    g2 = [(p, s) for p in range(PS) for s in (1, 2, 3)] + [(p, 0) for p in range(H)]
    g2 += [(p, s) for s in (1, 2, 3) for p in range(PS, 28)] + [(p, 0) for p in range(H, 28)]
    fin, chk_at = {}, {}
    for p, s_ in g2:
        k = order[p]; o = 4096 * (p if p < 16 else p % 8)
        e = dict(acc=ACC2[s_], rd=(RQ2[s_], o, RQ2[s_], o + 1024), b=GF[k], first=p == 0 and s_ > 0,
                 bump={16: 65536, 24: -131072}.get(p))
        if s_ == 1 and k[1] == 1: chk_at[k[0]] = len(seq)
        if s_ == 1 and k[1] == 0: e["mark"] = [f"e{k[0]}"]
        if p == 0: e["mark"] = e.get("mark", []) + [{1: "e2", 2: "e3", 3: "eX", 0: "init0"}[s_]]
        if p == 27: fin[s_] = len(seq)
        seq.append(e)
    NS = len(seq)
    first16 = min(i for i in range(N1, NS) if g2[i - N1][0] >= 16)
    PD = 5
    BQ, BX, BY, BW0, BW1 = cfg.get("bq", 44), cfg.get("bx", 120), cfg.get("by", 154), cfg.get("bw0", 206), cfg.get("bw1", first16 - 10)
    gate = {64: BQ, 128: BX, 160: BY, N1: BW0, first16: BW1}
    for n, t in gate.items(): assert t <= n - PD - 1
    issued, comp, nrd = [0], [-1], []
    def lg_wait(upto):
        n = sum(nrd[upto + 1:])
        a(f"s_waitcnt lgkmcnt({min(n, 15)})")
        comp[0] = upto
    def read_one():
        n = issued[0]; e = seq[n]; d = 4 * (n % RING)
        if sum(nrd[comp[0] + 1:]) > 12: lg_wait(n - 4)
        if len(e["rd"]) == 2:
            a(f"ds_read_b128 {ar(d)}, v{e['rd'][0]} offset:{e['rd'][1]}")
        else:
            v0, o0, v1, o1 = e["rd"]
            if e.get("bump"): a(f"v_add_u32 v{v0}, {hex(e['bump'] & 0xffffffff)}, v{v0}")
            a(f"ds_read_b64_tr_b16 {ar(d,2)}, v{v0} offset:{o0}\nds_read_b64_tr_b16 {ar(d+2,2)}, v{v1} offset:{o1}")
        nrd.append(len(e["rd"]) // 2)
        issued[0] += 1
    def may_run_ahead(i):
        n = issued[0]
        return n < NS and n <= i + RING - 2 and gate.get(n, -9) <= i and (n < N1 or "rq2" in done)
    fill, at, done, cur = [], {}, set(), [0]
    vq, backlog = [], [0]
    def when(i, fn): at.setdefault(i, []).append(fn)
    def lines(txt): return [(cost(l.strip()), l.strip()) for l in txt.strip().split("\n")]
    def mark(m): return [(0, lambda: done.add(m))]
    def pop():
        c, it = fill.pop(0)
        it() if callable(it) else a(it)
    def vput(earliest, deadline, pipe, fn, key=None): vq.append([deadline, len(vq) + 1000 * cur[0], earliest, pipe, fn, key])
    def vrun(it):
        vq.remove(it); it[4](); backlog[0] += it[3]
        if cfg.get("verbose"): print(f"  i={cur[0]} vmem {it[5]} backlog={backlog[0]}", file=sys.stderr)
    def vforce(key):
        for it in sorted(vq):
            if it[5] == key: vrun(it)
    def store(l, tag):
        def f():
            a.vm(l, tag); backlog[0] += cfg.get("c_st", 64)
        return (8, f)
    def split_check(i, name, loads, chk, pre=None, after=None):
        def one():
            if a.vcc_busy: return split_check(cur[0] + 1, name, loads, chk, pre, after)
            if pre: pre()
            check1(a, name, chk)
            when(cur[0] + 1, lambda: (check2(a, name, loads, chk), done.add("c" + name), after and after()))
        when(i, one)
    def barrier(t, key, freed):
        def f():
            if key: vforce(key); a.wait(key)
            if freed is not None:
                assert freed <= t + RING - 2
                while issued[0] <= freed: read_one()
                if comp[0] < freed: lg_wait(freed)
            a("s_barrier")
        when(t, f)
    nwd = [0]
    def wd_dma():
        b, sg = order[nwd[0]]
        s_, off = GST[b]
        if Stream.cur != "wd" or nwd[0] == 24:
            a(f"s_lshl_b32 {sM0}, {sWID}, 10\ns_add_u32 m0, {sM0}, {L_H1 + 4096*nwd[0] if nwd[0] < 24 else 4096*(nwd[0]-24)}")
            Stream.cur = "wd"
        a(f"s_lshl4_add_u32 {sSO}, {s_[sg]}, {sWDb[off]}")
        a.vm(f"buffer_load_dwordx4 {vDW}, {srd('WD')}, {sSO} offen lds", "wd0" if nwd[0] < 16 else "wd1")
        a("s_add_u32 m0, m0, 4096")
        nwd[0] += 1
    def g_lines(b):
        s_, off = GST[b]
        return [f"buffer_load_dwordx4 {GF[(b,sg)]}, {vL16}, {srd('WS')}, {s_[sg]} offen offset:{1024*off} sc1" for sg in (1, 2, 3)]
    CL = cfg.get("c_ld", 70)
    DA, DB, DC, D1 = cfg.get("da", 28), cfg.get("db", 14), cfg.get("dc", 24), cfg.get("d1", 20)
    STG = {"a": [[0, 1], [2, 3], ["X"]], "b": [[0, 1, 2], [3, "X"]], "c": [[0, 1], [2, 3, "X"]]}[cfg.get("stg", "a")]
    def g_queue(b, t0):
        for n, l in enumerate(g_lines(b)):
            vput(t0, chk_at[b] - 24, CL, lambda l=l, b=b: a.vm(l, f"g{b}"), f"g{b}")
    def stage(k):
        fr = 28 + (k & 1)
        ld = f"buffer_load_dword v{fr}, v18, {srd('WS')}, {sRPF} offen offset:{16*(k+1)} sc1"
        if k == 0: vforce("clr")
        if cfg.get("verbose"): print(f"  i={cur[0]} vmem stage{k}", file=sys.stderr)
        t2 = min(cur[0] + DA + DB + DC, chk_at[STG[k][0]] - 4)
        t0 = min(cur[0] + DA, t2 - 2); t1 = max(t0 + 1, min(cur[0] + DA + DB, t2 - 1))
        when(t0, lambda: (a.wait(f"gst{STG[k][-1]}", "clr"),
                          a.vm(f"buffer_store_dword v30, v15, {srd('WS')}, {sF2} offen offset:{16*(k+1)} sc1", "f3st")))
        when(t1, lambda: a.vm(ld, f"f3{k}"))
        split_check(t2, f"f3{k}", [ld], f"v_cmp_ne_u32 vcc, v30, v{fr}", after=lambda: [g_queue(b, 0) for b in STG[k]])
    def epi(b):
        s_, off = GST[b]
        post = [(0, lambda k=k: stage(k)) for k in range(len(STG)) if b == STG[k][-1]]
        if b in ("Y", "Z"): post = [(0, lambda: g_queue(b, cur[0] + D1))]
        return (epi_block(a, ACC[b], OWN[b])
                + [store(f"buffer_store_dwordx4 {vr(OWN[b])}, {vL16}, {srd('WS')}, {s_[0]} offen offset:{1024*off} sc1", f"gst{b}")]
                + post + mark(f"e{b}"))
    for b in BLK:
        e = seq[chk_at[b]]
        if b in ("Y", "Z"):
            def pre(b=b):
                while f"e{b}" not in done: pop()
                assert "cf30" in done
                vforce(f"g{b}")
            split_check(chk_at[b] - 3, f"g{b}", g_lines(b), sentinel([GV[(b, sg)] for sg in (1, 2, 3)], 31), pre=pre)
            e["need"] = f"cg{b}"
        else:
            e["need"] = f"cf3{[b in st for st in STG].index(True)}"; e["gw"] = f"g{b}"
    F2P = cfg.get("f2p", 12)
    F2C = F2P + cfg.get("f2d", 24)
    f2l = f"buffer_load_dword v29, v19, {srd('WS')}, {sRPF} offen sc1"
    use = {e["vw"]: i for i, e in enumerate(seq) if e.get("vw") is not None}
    sSS = sT[7]
    def after_f2():
        for ks in range(16, 32): vput(0, use[ks] - 30, cfg.get("c_a", CL), a_load, f"a{ks}")
        for c in range(8):
            vput(0, lastof[0] - 40, 40, lambda c=c: a.vm(f"buffer_load_dword v{120+c}, v16, {srd('WS')}, {sSS} offen offset:{128*c} sc1", "ss"), "ss")
        vput(0, lastof[0] - 40, 40, lambda: a.vm(f"buffer_load_dword v6, v17, {srd('WS')}, {sT[5]} offen offset:128 sc1", "ss"), "ss")
    when(F2P, lambda: a.vm(f2l, "f2c"))
    split_check(F2C, "f2c", [f2l], "v_cmp_ne_u32 vcc, v30, v29", after=after_f2)
    for ks in range(APD, 16): vput(0, use[ks] - 30, cfg.get("c_a", CL), a_load, f"a{ks}")
    def ag(g):
        return (f"ag{g}", [f"s_add_u32 {sM0}, {sWRM}, {4096*g}"] +
                [f"buffer_load_dwordx4 {vr(HA+16*g+4*n)}, {vL16}, {srd('WS')}, {sM0} offen offset:{1024*n} sc1" for n in range(4)],
                sentinel([HA + 16 * g + 4 * n for n in range(4)], 31))
    for g in (1, 2, 3):
        split_check(16 * g - 3, *ag(g), pre=lambda g=g: [vforce(f"a{k}") for k in range(4 * g, 4 * g + 4)])
        seq[16 * g]["need"] = f"cag{g}"
    for n in range(a.q.left()): vput(0, BQ - 12, cfg.get("c_w", 68), a.q, "q1")
    for n in range(rp.i, 24): vput((0, BQ + 1, BQ + 1)[n // 8], (BX - 30, BY - 30, BY - 30)[n // 8], cfg.get("c_rp", 70), rp, "rp" + "XZZ"[n // 8])
    for n in range(2):
        vput(cfg.get("clr0", 76) + cfg.get("clrs", 10) * n, 90, cfg.get("c_st", 64),
             lambda n=n: a.vm(f"buffer_store_dwordx4 {vr(NEG)}, {vL16}, {srd('WS')}, {sGP[0]} offen offset:{1024*(n+1)} sc1", "clr"), "clr")
    for p in range(28):
        vput(1 + (BX if p < 16 else BY if p < 24 else BW0), (BW0 if p < 16 else BW1) - 18, cfg.get("c_w", 68), wd_dma, "wd0" if p < 16 else "wd1")
    barrier(BQ, "q1", 63); barrier(BX, "rpX", 127); barrier(BY, "rpZ", 159)
    barrier(BW0, "wd0", 191); barrier(BW1, "wd1", None)
    sub = K(cfg); gp_setup(sub)
    pre_stream = [l.strip() for l in sub.lines] + [f"v_mov_b32 v{NEG+d}, -1" for d in range(4)] + [l for _, l in lines(f"""
        s_sub_u32 {sT[0]}, 32, {sRB}
        s_cmp_eq_u32 {sRB}, 0
        s_cselect_b32 {sT[0]}, 16, {sT[0]}
        s_cmp_lt_u32 {sWID}, 2
        s_cselect_b32 {sT[0]}, {sRB}, {sT[0]}
        s_and_b32 {sT[5]}, {sWID}, 1
        s_lshl_b32 {sT[5]}, {sT[5]}, 10
        s_add_u32 {sT[0]}, {sT[0]}, {sT[5]}
        v_lshl_add_u32 v5, v3, 5, {sT[0]}
        v_lshlrev_b32 v7, 10, v5
        v_and_b32 v17, 0xfc00, v7
        v_lshrrev_b32 v26, 6, v5
        v_lshl_add_u32 v17, v26, 2, v17
        s_mov_b32 {sT[5]}, {MU_OFF}
        s_lshl_b32 {sSS}, {sR}, 11
        s_add_u32 {sSS}, {sSS}, {SS_OFF}
        v_lshlrev_b32 v16, 2, v3
        v_lshl_add_u32 v16, v4, 10, v16
        v_lshrrev_b32 v26, 4, {vL}
        v_and_b32 v27, 15, {vL}
        v_lshlrev_b32 v28, 2, v26
        v_xor_b32 v27, v27, v28
        v_lshlrev_b32 v27, 4, v27
        v_lshl_add_u32 {vDW}, v26, 10, v27
        s_mul_i32 {sT[0]}, {sR}, {GR}
        s_add_u32 {sT[0]}, {sT[0]}, {G_OFF}
        s_lshl_b32 {sT[0]}, {sT[0]}, 4
        s_lshl_b32 {sWDb[0]}, {sWID}, 12
        s_sub_u32 {sWDb[0]}, {sWDb[0]}, {sT[0]}
        s_and_b32 {sT[0]}, {sCB}, 3
        s_lshl_b32 {sT[0]}, {sT[0]}, 8
        s_add_u32 {sWDb[0]}, {sWDb[0]}, {sT[0]}
        s_add_u32 {sWDb[1]}, {sWDb[0]}, 16384
        s_add_u32 {sWDb[2]}, {sWDb[0]}, 32768
        s_add_u32 {sWDb[3]}, {sWDb[0]}, 49152
        s_lshl2_add_u32 s28, {sJ}, {sWID}
        s_cmp_lt_u32 s28, 64
        s_cselect_b32 {sM0}, 0, 192
        s_cselect_b32 s30, 64, 48
        s_lshr_b32 s29, {sXCD}, 1
        s_mul_i32 s29, s29, s30
        s_add_u32 s29, s29, {sM0}
        s_add_u32 s29, s29, s28
        s_cmp_lt_u32 s28, 112
        s_cselect_b32 s29, s29, 0x1000
        s_lshl_b32 {sT1C}, s29, 12
        v_cmp_gt_u32 vcc, 32, {vL}
        v_lshlrev_b32 v100, 7, {vL}
        v_cndmask_b32 v100, v15, v100, vcc
        """)]
    if cfg.get("d0", 20) >= 0:
        when(cfg.get("d0", 20), lambda: a.vm(f"buffer_load_dword v0, v100, {srd('WD')}, {sT1C} offen", "warm"))
    def stats():
        vforce("ss")
        fill.extend([(4, lambda: a.wait("ss"))] + lines(f"""
        v_lshlrev_b32 v26, 16, v{HA}
        v_lshlrev_b32 v27, 16, v{HA}
        v_add_f32 v120, v120, v121
        v_add_f32 v122, v122, v123
        v_permlane32_swap_b32 v26, v27
        v_sub_f32 v6, v6, v26
        v_add_f32 v124, v124, v125
        v_add_f32 v126, v126, v127
        v_add_f32 v120, v120, v122
        v_add_f32 v124, v124, v126
        v_add_f32 v16, v120, v124
        v_mov_b32 v17, v16
        v_mov_b32 v26, {fl(1e-5)}
        v_permlane32_swap_b32 v16, v17
        v_add_f32 v16, v16, v17
        v_fmamk_f32 v17, v16, {fl(1/512)}, v26
        v_rsq_f32 v16, v17
        v_mul_f32 v16, {fl(-1.4426950408889634)}, v16
        """))
    when(lastof[0] - 4, stats)
    for b in range(4):
        when(lastof[b] + 2, lambda b=b: fill.extend(epi(b)))
    when(127, lambda: a.stamp("quad"))
    when(161, lambda: fill.extend(epi("X") + lines(f"""
        v_bfe_u32 v26, {vL}, 2, 2
        v_lshlrev_b32 v8, 6, v26
        v_lshl_add_u32 v26, v4, 3, v26
        v_lshl_add_u32 v8, v26, 8, v8
        v_and_b32 v27, 24, v14
        v_and_b32 v26, 16, {vL}
        v_lshl_add_u32 v27, v26, 1, v27
        v_add_u32 v8, v8, v27
        s_lshr_b32 {sT[0]}, {sCB}, 2
        s_lshl_b32 {sT[0]}, {sT[0]}, 6
        v_xor_b32 v8, {sT[0]}, v8
        v_add_u32 v8, {L_H1}, v8
        v_xor_b32 v9, 64, v8
        v_xor_b32 v10, 128, v8
        v_xor_b32 v11, 192, v8
        v_and_b32 {vTG}, 0x10001, v30
        """) + mark("rq2")))
    seq[N1 - PD - 1].setdefault("mark", []).append("rq2")
    when(193, lambda: fill.extend(epi("Y")))
    sOC = sT[5]
    def after_g1():
        a.stamp("g1end")
        fill.extend(epi("Z"))
        fill.extend(lines("\n".join(f"v_mov_b32 v{224+d}, v6" for d in range(16))) + mark("init0"))
        fill.extend(lines(f"""
        s_and_b32 {sT[0]}, {sCB}, 3
        s_lshr_b32 {sOC}, {sCB}, 2
        s_lshl2_add_u32 {sOC}, {sT[0]}, {sOC}
        s_lshl_b32 {sT[0]}, {sOC}, 11
        s_add_u32 {sHC}, {sT[0]}, {sWRM}
        """))
        fill.append((0, lambda: [vput(0, NS - 40, CL, lambda ks=ks: a.vm(
            f"buffer_load_dwordx4 {vr(HR+4*ks)}, {vL16}, {srd('WS')}, {sHC} offen offset:{1024*ks} sc1", "res"), "res") for ks in range(2)]))
        fill.extend(lines(f"""
        s_lshl_b32 {sOC}, {sOC}, 6
        s_mov_b32 s29, 0xfffefffe
        v_bfe_u32 v26, {vL}, 2, 1
        v_cmp_eq_u32 s[30:31], v26, v4
        v_and_b32 v26, 1, {vL}
        v_lshlrev_b32 v26, 4, v26
        v_mov_b32 v27, 0x3f80
        v_lshlrev_b32 v26, v26, v27
        v_cndmask_b32 v26, 0, v26, s[30:31]
        v_bfe_u32 v27, {vL}, 1, 1
        v_bfe_u32 v{SEL}, {vL}, 3, 2
        v_lshl_or_b32 v27, v{SEL}, 1, v27
        v_lshl_add_u32 v5, v4, 4, v7
        """))
        pr = ["s[30:31]", "s[60:61]", "s[62:63]"]
        for d in range(10):
            if d < 8: fill.extend(lines(f"v_cmp_eq_u32 {pr[d%3]}, {d}, v27"))
            if d > 1: fill.extend(lines(f"v_cndmask_b32 v{SEL+d-2}, 0, v26, {pr[(d-2)%3]}"))
    when(N1 + 1, after_g1)
    def p_lines(s_):
        return [f"buffer_load_dwordx4 {vr(PF+8*(s_-1)+4*ks)}, {vL16}, {srd('WS')}, {sPIN if s_ < 3 else sPIN2} offen offset:{(2048*(s_-1)+1024*ks) % 4096} sc1" for ks in range(2)]
    def p_chk(s_):
        r = PF + 8 * (s_ - 1)
        return "\n".join([f"v_xor_b32 v{r+d}, {vTG}, v{r+d}" for d in range(8)] +
                         [f"v_or3_b32 v31, v{r}, v{r+1}, v{r+2}", f"v_or3_b32 v31, v31, v{r+3}, v{r+4}", f"v_or3_b32 v31, v31, v{r+5}, v{r+6}",
                          f"v_or_b32 v31, v31, v{r+7}", "v_and_b32 v31, 0x10001, v31", "v_cmp_ne_u32 vcc, 0, v31"])
    ploaded = set()
    def p_load(s_):
        if s_ not in ploaded:
            ploaded.add(s_)
            for l in p_lines(s_): a.vm(l, f"pp{s_}")
    def send(s_):
        if s_ == 3: a.stamp("fend")
        c = ACC2[s_]
        fill.extend(lines(f"s_xor_b32 {sT[0]}, {sCB}, {4*s_}\ns_sub_i32 {sT[0]}, {sT[0]}, {sCB}\ns_mul_i32 {sT[0]}, {sT[0]}, 6144\n"
                          f"s_add_u32 {sT[0]}, {sT[0]}, {sPIN}\ns_add_u32 {sT[0]}, {sT[0]}, {2048*(s_-1)}"))
        for ks in range(2):
            for d in range(4):
                fill.extend(lines(f"v_cvt_pk_bf16_f32 v{c+8*ks+d}, v{c+8*ks+2*d}, v{c+8*ks+2*d+1}\nv_and_or_b32 v{c+8*ks+d}, v{c+8*ks+d}, s29, {vTG}"))
            fill.append(store(f"buffer_store_dwordx4 {vr(c+8*ks)}, {vL16}, {srd('WS')}, {sT[0]} offen offset:{1024*ks} sc1", f"pst{s_}"))
        fill.append((0, lambda: when(cur[0] + cfg.get("dp", 24), lambda: p_load(s_))))
    for s_ in (1, 2, 3): when(fin[s_] + (1 if s_ < 3 or fin[3] - fin[2] > 2 else 0), lambda s_=s_: send(s_))

    CAP, THR, GAP = cfg.get("cap", 26), cfg.get("thr", 120), cfg.get("gap", 33)
    NPRE = cfg.get("npre", 20)
    for n in range(NPRE):
        read_one()
        k = -(-len(pre_stream) // (NPRE - n))
        a("\n".join(pre_stream[:k])); pre_stream = pre_stream[k:]
    flag_check(a, *ag(0))
    for i, e in enumerate(seq):
        cur[0] = i
        for m in e.get("mark", []):
            while m not in done: pop()
        if e.get("need"): assert e["need"] in done, (i, e["need"])
        if e.get("gw"): vforce(e["gw"]); a.wait(e["gw"])
        if e.get("vw") is not None and e["vw"] >= 16:
            vforce(f"a{e['vw']}"); a.wait(f"a{e['vw']}")
        if comp[0] < i: lg_wait(min(i + 1, issued[0] - 1))
        c = vr(e["acc"], 16)
        a(f"{MF32} {c}, {ar(4 * (i % RING))}, {e['b']}, {0 if e['first'] else c}")
        a.stamp(f"m{i}")
        while i in at:
            for fn in at.pop(i): fn()
        nr = 0
        while issued[0] < NS and issued[0] <= i + PD: read_one(); nr += 1
        backlog[0] = max(0, backlog[0] - GAP)
        el = sorted(it for it in vq if it[2] <= i)
        if el and backlog[0] <= THR: vrun(el[0])
        reserve = 4 if comp[0] < i + 1 else 0
        while fill and a.slots + fill[0][0] + reserve <= CAP: pop()
        while nr < 1 + (i & 1) and may_run_ahead(i) and a.slots + 2 * len(seq[issued[0]]["rd"]) + reserve <= 24:
            read_one(); nr += 1
        if cfg.get("verbose") and i % 16 == 0: print(f"  i={i} vmem ahead{issued[0]-i}", file=sys.stderr)
    while fill: pop()
    vforce("res")
    assert not vq, vq
    a.stamp("mend")
    own = vr(ACC2[0], 16)
    if 3 not in ploaded and cfg.get("p_wait", 1): a.wait("pst3")
    for s_ in (1, 2, 3): p_load(s_)
    a.wait("res")
    for ks in range(2):
        a(f"{MF32} {own}, {vr(SEL+4*ks)}, {vr(HR+4*ks)}, {own}")
    for s_ in (1, 2, 3):
        flag_check(a, f"pp{s_}", p_lines(s_), p_chk(s_))
        if s_ == 3: a.stamp("pgot")
        for ks in range(2):
            a(f"{MF32} {own}, {vr(SEL+4*ks)}, {vr(PF+8*(s_-1)+4*ks)}, {own}")
    for ks in range(2):
        for d in range(4):
            a(f"v_cvt_pk_bf16_f32 v{64+4*ks+d}, v{224+8*ks+2*d}, v{224+8*ks+2*d+1}")
        a.vm(f"buffer_store_dwordx4 {vr(64+4*ks)}, v5, {srd('OUT')}, {sOC} offen offset:{32*ks}{cfg.get('oflag', '')}", "ost")

def stamp_out(a):
    a("s_waitcnt vmcnt(0)")
    a.stamp("end")
    a("s_waitcnt lgkmcnt(0)")
    for i in range(16):
        a(f"v_mov_b32 v{4+i}, {f's{68+2*i}' if i < a.nst else 's100' if i == 15 else 0}")
    a(f"""
    s_lshl2_add_u32 {sT[0]}, s2, {sWID}
    s_lshl_b32 {sT[0]}, {sT[0]}, 6
    s_add_u32 {sT[0]}, {sT[0]}, {STAMP_OFF}
    v_mov_b32 v3, 0
    s_mov_b64 exec, 1
    """)
    for q in range(4):
        a(f"buffer_store_dwordx4 {vr(4+4*q)}, v3, {srd('WS')}, {sT[0]} offen offset:{16*q}")

def build(cfg):
    a = K(cfg)
    prologue(a); phase_a(a); window1(a); phase_b(a); ffn(a)
    if cfg.get("every"): a.nst = 14
    if cfg.get("stamps"): stamp_out(a)
    a("L_end:\ns_endpgm")
    a(a.tail0)
    for t in a.tail: a(t)
    a("L_last:\ns_endpgm")
    if cfg.get("every"):
        n0, st = cfg.get("from", 10), cfg["every"]
        for k in range(13, 0, -1):
            a.lines.insert(n0 + st * k, f"    {'s_memtime' if cfg.get('cyc') else 's_memrealtime'} s[{68+2*k}:{69+2*k}]")
        cfg["names"] = ["start"] + [f"L{n0+st*k}" for k in range(1, 14)] + ["end"]
    lines, added = hazard.fix(a.lines)
    print(f"{len(lines)} lines, {added} wait states added; stamps: {cfg.get('names')}", file=sys.stderr)
    head = open(f"cdna_kernels/{NAME}.s.ref").read().split("; Override launch")[0]
    kn = NAME + "_kernel"
    if cfg.get("aslist"):
        head += f"; @launch kernel={kn} grid=(256,1,1) block=(256,1,1) lds=163840\n"
    else:
        head += "; @launch grid=(256,1,1) block=(256,1,1) lds=163840\n"
    return head + HEAD + kernel_open(kn) + "\n".join(lines) + '\n.section .rodata,"a"\n' + descriptor(kn, 512, 102, 256)

if __name__ == "__main__":
    cfg = {}
    for kv in sys.argv[2:]:
        k, v = kv.split("=")
        cfg[k] = int(v) if v.lstrip("-").isdigit() and (v == "0" or v[0] != "0") else v
    open(sys.argv[1], "w").write(build(cfg))
```

```python
import struct, sys
from asmlib import *
import hazard

NAME = "sequential_preLN__spectral_fnet__swiglu_ffn__prompt"
U_OFF, MU_OLD, SS_OFF, F1_OFF, F2_OFF, EP_OFF = 0, 0x240000, 0x244000, 0x268000, 0x270000, 0x27F000
HC_OFF, G_OFF, STAMP_OFF, P_OFF, RP_OFF, WS_BYTES = 0x280000, 0x480000, 0xBC0000, 0xC00000, 0x1200000, 0x1380000
RF_OFF = F1_OFF + 0x3000
MU_OFF, F1_OFF = 0x220000, 0x230000
GR = 112 * 1024
SPIN = 4000

SRD = dict(X=4, WS=8, WG=12, WU=16, WD=20, OUT=24, TMP=28)
KOFF = dict(X=0, WG=48, WU=56, WD=64, OUT=72, WS=88)
SIZE = dict(X=2097152, WG=1835008, WU=1835008, WD=1835008, OUT=2097152, WS=WS_BYTES, TMP=1835008)
srd = lambda n: f"s[{SRD[n]}:{SRD[n]+3}]"
fl = lambda x: hex(struct.unpack("<I", struct.pack("<f", x))[0])
vr = lambda b, n=4, p="v": f"{p}[{b}:{b+n-1}]"
ar = lambda b, n=4: vr(b, n, "a")
MF16, MF32 = "v_mfma_f32_16x16x32_bf16", "v_mfma_f32_32x32x16_bf16"

sWID, sXCD, sJ, sRB, sCB, sTAG, sR = "s32", "s33", "s34", "s35", "s36", "s37", "s38"
sT = [f"s{39+i}" for i in range(9)]
sGQ = [f"s{48+i}" for i in range(4)]
sGP = [f"s{52+i}" for i in range(4)]
sRPS, sRPD, sRPF, sF2 = "s56", "s57", "s58", "s59"
sS2, sQ, sP, sWROW, sT1C, sPIN, sM0, sSO = "s60", "s61", "s62", "s63", "s64", "s65", "s66", "s67"
sPIN2, sWRM = "s3", "s101"
sPAIR, sUD, sMUD, sRBB = sGP[0], sGP[1], sGP[2], sGP[3]
sF2B = sGQ[3]
vL, vL16 = "v1", "v2"
NEG = 22
L_H1, L_S = 65536, 131072
L_RP = 98304
XP = 1040
LX = 163840 - 50176
LST = LX + 32 * XP
LH = LST + 512

VOP3 = ("v_fma_", "v_cvt_pk", "v_max3", "v_lshl_add", "v_lshl_or", "v_add3", "v_bfe", "v_alignbit", "v_fmamk", "v_perm_b32", "v_and_or", "v_or3")
def cost(t):
    if t.endswith(":"): return 0
    if t.startswith(hazard.TRANS): return 8
    if t.startswith("buffer_store_dwordx4"): return 20
    if t.startswith(VOP3) or (t.startswith("v_") and ("0x" in t or "s[" in t)): return 5
    return 4

class K(Asm):
    def __init__(self, cfg):
        super().__init__()
        self.cfg = cfg
        self.vmlog = []
        self.vmdone = -1
        self.vcc_busy = None
        self.nst = 0
        self.tail = []
        self.slots = 0
    def __call__(self, s=""):
        n = len(self.lines)
        super().__call__(s)
        for l in self.lines[n:]:
            t = l.strip()
            if t.startswith("v_mfma"): self.slots = 0
            else: self.slots += cost(t)
    def vm(self, ins, tag, cond=False):
        self(ins)
        self.vmlog.append((tag, cond))
    def wait(self, *tags):
        last = max(i for i, (t, _) in enumerate(self.vmlog) if t in tags)
        if last <= self.vmdone: return
        n = sum(1 for (t, c) in self.vmlog[last + 1:] if not c)
        self(f"s_waitcnt vmcnt({min(n, 63)})")
        self.vmdone = last
    def stamp(self, name):
        only = self.cfg.get("only")
        if only and name not in ["start", "end"] + str(only).split(","): return
        if not only and (name[0] == "_" or name[0] == "m" and name[1:].isdigit()): return
        if self.cfg.get("stamps") and name not in str(self.cfg.get("nostamp", "")).split(","):
            self(f"{'s_memtime' if self.cfg.get('cyc') else 's_memrealtime'} s[{68+2*self.nst}:{69+2*self.nst}]")
            self.cfg.setdefault("names", []).append(name)
            self.nst += 1
            assert self.nst <= 15

def dma(a, voff, mat, tag, step_src):
    a.vm(f"buffer_load_dwordx4 {voff}, {srd(mat)}, {sSO} offen lds", tag)
    a(f"s_add_u32 m0, m0, 1024\ns_add_u32 {sSO}, {sSO}, {step_src}")

def dma_setup(a, rows, colshift, colbase, ldsshift, ldsbase):
    a(f"""
    s_lshl_b32 {sM0}, {sWID}, {ldsshift}
    s_add_u32 m0, {sM0}, {ldsbase}
    s_lshl_b32 {sSO}, {sCB}, {colshift}
    {f"s_lshl1_add_u32 {sSO}, {sWROW}, {sSO}" if rows == 128 else f"s_add_u32 {sSO}, {sSO}, {sWROW}"}
    s_add_u32 {sSO}, {sSO}, {colbase}
    """)

vDQ, vDQU = "v20", "v21"
vRQ = [8, 9, 10, 11]

def spin_flags(a, name, ld, cmp_lines):
    a(f"s_mov_b32 {sT[8]}, 0\nL_{name}:")
    a.vm(ld, name)
    a(f"s_add_u32 {sT[8]}, {sT[8]}, 1\ns_cmp_gt_u32 {sT[8]}, {SPIN}\ns_waitcnt vmcnt(0)\ns_cbranch_scc1 L_{name}_ok")
    a(cmp_lines)
    a(f"s_cbranch_vccnz L_{name}\nL_{name}_ok:")
    a.vmdone = len(a.vmlog) - 1

def warm(a, site):
    plan = dict(kv.split(":") for kv in str(a.cfg.get("warm", "q:x7")).split(","))
    for what, at in plan.items():
        if at != site: continue
        if what in "pqs":
            lg, base, mul = {"q": (2, 0, 512), "p": (1, 2048, 256), "s": (0, 3072, 128)}[what]
            a(f"""
            s_lshr_b32 {sM0}, {sXCD}, 1
            s_mul_i32 {sM0}, {sM0}, {mul}
            s_add_u32 {sM0}, {sM0}, {sWRM}
            v_lshrrev_b32 v30, {lg}, {vL}
            v_mul_u32_u24 v30, 3584, v30
            v_and_b32 v31, {(1 << lg) - 1}, {vL}
            v_lshl_add_u32 v30, v31, 7, v30
            s_mov_b64 exec, {hex((1 << (8 << lg)) - 1)}
            """.replace("s_mov_b64 exec, 0xffffffff", "s_mov_b32 exec_hi, 0"))
            a.vm(f"buffer_load_dword v0, v30, {srd('TMP')}, {sM0} offen offset:{base}", "warm")
            a("s_mov_b64 exec, -1")
        else:
            a(f"""
            s_lshl2_add_u32 {sF2}, {sJ}, {sWID}
            s_cmp_lt_u32 {sF2}, 64
            s_cselect_b32 {sM0}, 0, 192
            s_cselect_b32 {sPIN}, 64, 48
            s_lshr_b32 {sPIN2}, {sXCD}, 1
            s_mul_i32 {sPIN2}, {sPIN2}, {sPIN}
            s_add_u32 {sPIN2}, {sPIN2}, {sM0}
            s_add_u32 {sPIN2}, {sPIN2}, {sF2}
            s_cmp_lt_u32 {sF2}, 112
            s_cselect_b32 {sPIN2}, {sPIN2}, 0x1000
            s_lshl_b32 {sPIN2}, {sPIN2}, 12
            v_lshlrev_b32 v77, 7, {vL}
            s_mov_b32 exec_hi, 0
            """)
            a.vm(f"buffer_load_dword v0, v77, {srd('WD')}, {sPIN2} offen", "warm")
            a("s_mov_b64 exec, -1")

class ScalarWarm:
    def __init__(self, a): self.a, self.i = a, 0
    def __call__(self, k):
        a = self.a
        if self.i == 0 and k:
            a(f"""
            s_lshl2_add_u32 s28, {sJ}, {sWID}
            s_min_u32 s28, s28, 111
            s_cmp_lt_u32 s28, 64
            s_cselect_b32 {sM0}, 0, 192
            s_cselect_b32 s30, 64, 48
            s_lshr_b32 s29, {sXCD}, 1
            s_mul_i32 s29, s29, s30
            s_add_u32 s29, s29, {sM0}
            s_add_u32 s29, s29, s28
            s_lshl_b32 s29, s29, 12
            s_add_u32 s28, s20, s29
            s_addc_u32 s29, s21, 0
            """)
        for _ in range(min(k, 32 - self.i)):
            a(f"s_load_dword s30, s[28:29], {128*self.i}")
            self.i += 1

def prologue(a):
    cfg = a.cfg
    a.stamp("start")
    if cfg.get("stamps"): a("s_mov_b32 s100, 0")
    a("s_cmp_ge_u32 s2, 256\ns_cbranch_scc1 L_end")
    for n in ("X", "WS", "WG", "WU", "WD", "OUT"):
        a(f"s_load_dwordx2 s[{SRD[n]}:{SRD[n]+1}], s[0:1], {KOFF[n]}")
    a(f"v_lshrrev_b32 v2, 6, v0\nv_and_b32 {vL}, 63, v0")
    if cfg.get("cpf", 1):
        a(f"""
        s_getpc_b64 s[28:29]
        L_pc:
        s_lshr_b32 {sJ}, s2, 3
        s_lshl_b32 {sT[2]}, {sJ}, 10
        v_lshl_add_u32 v8, v2, 1, {vL}
        v_lshl_add_u32 v8, v8, 7, {sT[2]}
        v_min_u32 v8, L_last-L_pc, v8
        v_mov_b32 v9, s29
        v_add_co_u32 v8, vcc, s28, v8
        v_addc_co_u32 v9, vcc, 0, v9, vcc
        s_mov_b64 exec, 3
        """)
        a.vm("global_load_dword v0, v[8:9], off", "warm")
        a("s_mov_b64 exec, -1")
    a(f"v_readfirstlane_b32 {sWID}, v2")
    for n in SRD:
        a(f"s_mov_b32 s{SRD[n]+2}, {SIZE[n]}\ns_mov_b32 s{SRD[n]+3}, 0x20000")
    a(f"""
    s_and_b32 {sXCD}, s2, 7
    s_lshr_b32 {sJ}, s2, 3
    s_lshr_b32 {sRBB}, {sJ}, 4
    s_lshl1_add_u32 {sRBB}, {sXCD}, {sRBB}
    s_sub_u32 {sS2}, 32, {sRBB}
    s_cmp_eq_u32 {sRBB}, 0
    s_cselect_b32 {sT1C}, 16, {sS2}
    s_bitcmp1_b32 {sJ}, 3
    s_cselect_b32 {sS2}, {sT1C}, {sRBB}
    s_and_b32 {sT[0]}, {sJ}, 4
    s_lshl3_add_u32 {sS2}, {sT[0]}, {sS2}
    s_lshl_b32 {sT[0]}, {sWID}, 19
    s_lshl_b32 {sT[1]}, {sS2}, 10
    s_add_u32 {sT[0]}, {sT[0]}, {sT[1]}
    s_add_u32 {sT[1]}, {sT[0]}, 0x40000
    v_lshlrev_b32 {vL16}, 4, {vL}
    v_and_b32 v3, 15, {vL}
    v_lshrrev_b32 v4, 4, {vL}
    v_and_b32 v5, 3, {vL}
    v_lshl_add_u32 v5, v4, 2, v5
    v_lshlrev_b32 v5, 4, v5
    v_lshrrev_b32 v6, 2, v3
    v_lshl_add_u32 v7, v6, 16, v5
    s_and_b32 {sQ}, {sJ}, 1
    s_bfe_u32 {sP}, {sJ}, 0x10001
    """)
    a("s_waitcnt lgkmcnt(0)")
    X = 64
    a.stamp("_ka")
    for i in range(8):
        a.vm(f"buffer_load_dwordx4 {vr(X+4*i)}, v7, {srd('X')}, {sT[i//4]} offen offset:{256*(i%4)}", f"x{i}")
    a(f"""
    s_add_u32 s44, s8, {EP_OFF}
    s_addc_u32 s45, s9, 0
    s_load_dword {sTAG}, s[44:45], 0
    s_and_b32 {sRB}, {sXCD}, 1
    s_lshl_b32 {sRB}, {sRB}, 3
    s_and_b32 {sT[0]}, {sJ}, 7
    s_or_b32 {sRB}, {sRB}, {sT[0]}
    s_lshr_b32 {sCB}, {sXCD}, 1
    s_lshl_b32 {sCB}, {sCB}, 2
    s_lshr_b32 {sT[0]}, {sJ}, 3
    s_or_b32 {sCB}, {sCB}, {sT[0]}
    s_lshl_b32 {sR}, {sRB}, 2
    s_add_u32 {sR}, {sR}, {sWID}
    s_mul_i32 {sWROW}, {sWID}, {64*3584}
    """)
    a.stamp("_xi")

def late_setup(a):
    cfg = a.cfg
    a(f"""
    s_cmp_eq_u32 {sQ}, 1
    s_cselect_b32 s28, s16, s12
    s_cselect_b32 s29, s17, s13
    s_lshr_b32 {sT[1]}, {sJ}, 1
    s_lshl2_add_u32 {sWRM}, {sT[1]}, {sWID}
    s_mul_i32 {sWRM}, {sWRM}, {8*3584}
    s_lshr_b32 {sT[0]}, {sJ}, 3
    s_mul_i32 {sT[0]}, {sT[0]}, 3
    s_add_u32 {sT[0]}, {sT[0]}, {sWID}
    s_sub_u32 {sT[0]}, {sT[0]}, 1
    s_bfe_u32 {sT[1]}, {sJ}, 0x20001
    s_lshl2_add_u32 {sT[1]}, {sXCD}, {sT[1]}
    s_mul_i32 {sRPS}, {sT[1]}, {16*3584}
    s_lshl_b32 {sT[2]}, {sT[0]}, 7
    s_add_u32 {sRPS}, {sRPS}, {sT[2]}
    s_add_u32 {sRPS}, {sRPS}, 2048
    s_add_u32 {sRPD}, {sT[2]}, {sT[1]}
    s_lshl2_add_u32 {sRPD}, {sRPD}, {sQ}
    s_lshl_b32 {sRPD}, {sRPD}, 8
    s_add_u32 {sRPD}, {sRPD}, {RP_OFF}
    s_lshl3_add_u32 {sRPF}, {sT[0]}, {sXCD}
    s_lshl_b32 {sRPF}, {sRPF}, 5
    s_and_b32 {sT[1]}, {sJ}, 7
    s_add_u32 {sRPF}, {sRPF}, {sT[1]}
    s_lshl_b32 {sRPF}, {sRPF}, 2
    s_add_u32 {sRPF}, {sRPF}, {RF_OFF}
    s_cmp_eq_u32 {sWID}, 0
    s_cselect_b32 {sRPS}, 0x40000000, {sRPS}
    s_cselect_b32 {sRPD}, 0x40000000, {sRPD}
    s_cselect_b32 {sRPF}, 0x40000000, {sRPF}
    s_lshl_b32 {sT[0]}, {sPAIR}, 6
    s_add_u32 {sT[0]}, {sT[0]}, {sS2}
    s_lshl_b32 {sT[0]}, {sT[0]}, 5
    s_add_u32 {sT[0]}, {sT[0]}, {sQ}
    s_lshl_b32 {sT[0]}, {sT[0]}, 2
    s_add_u32 {sT[5]}, {sT[0]}, {F1_OFF}
    s_cmp_eq_u32 {sPAIR}, 4
    s_cselect_b32 {sT[0]}, 2, 1
    v_cmp_gt_u32 s[46:47], {sT[0]}, {vL}
    v_lshlrev_b32 v25, 15, {vL}
    v_mov_b32 v8, 0x40000000
    v_cndmask_b32 v25, v8, v25, s[46:47]
    v_lshlrev_b32 v22, 2, {vL}
    v_add_u32 v23, {LST + 256}, v22
    v_and_b32 v24, 31, {vL}
    v_mul_u32_u24 v24, {XP}, v24
    v_add_u32 v24, {LX}, v24
    """)
    quad_addrs(a)

def gp_setup(a):
    a(f"s_mul_i32 {sT[0]}, {sR}, {GR}\ns_add_u32 {sT[0]}, {sT[0]}, {G_OFF}")
    for sg in range(4):
        a(f"""
        s_xor_b32 {sT[1]}, {sCB}, {sg}
        s_lshl_b32 {sT[1]}, {sT[1]}, 10
        s_lshl2_add_u32 {sGQ[sg]}, {sT[1]}, {sT[0]}
        s_sub_u32 {sGP[sg]}, {sGQ[sg]}, {sT[1]}
        s_add_u32 {sGP[sg]}, {sGP[sg]}, {64*1024}
        """)
    a(f"""
    s_lshl_b32 {sPIN}, {sR}, 4
    s_add_u32 {sPIN}, {sPIN}, {sCB}
    s_mul_i32 {sPIN}, {sPIN}, 6144
    s_add_u32 {sPIN}, {sPIN}, {P_OFF}
    s_add_u32 {sPIN2}, {sPIN}, 4096
    """)

def quad_addrs(a):
    a(f"""
    v_lshrrev_b32 v26, 3, {vL}
    v_and_b32 v27, 7, {vL}
    v_mul_u32_u24 v28, 3584, v26
    v_and_b32 v26, 2, v26
    v_xor_b32 v27, v27, v26
    v_lshl_add_u32 {vDQ}, v27, 4, v28
    v_xor_b32 {vDQU}, 64, {vDQ}
    """)

def w1_addrs(a):
    a(f"""
    v_bfe_u32 v26, {vL}, 2, 2
    v_lshrrev_b32 v27, 5, {vL}
    v_lshl_add_u32 v26, v27, 3, v26
    v_and_b32 v28, 1, {vL}
    v_bfe_u32 v29, {vL}, 1, 1
    v_lshl_or_b32 v28, v28, 1, v29
    v_lshlrev_b32 v28, 3, v28
    v_lshl_add_u32 v14, v26, 7, v28
    v_and_b32 v29, 2, v26
    v_lshl_add_u32 v14, v29, 4, v14
    """)

def w1_addrs2(a):
    a(f"""
    v_bfe_u32 v29, {vL}, 4, 1
    v_mul_u32_u24 v29, {32768 + 64}, v29
    v_add_u32 v8, v14, v29
    v_xor_b32 v9, 32, v8
    v_xor_b32 v10, 64, v8
    v_xor_b32 v11, 96, v8
    v_add_u32 v12, {L_S}, {vL16}
    """)

def repack_load(a):
    a(f"""
    s_lshl_b32 {sM0}, {sWID}, 11
    s_add_u32 m0, {sM0}, {L_RP}
    s_add_u32 {sM0}, {sRPS}, {8*3584 - 1024}
    """)
    a.vm(f"buffer_load_dwordx4 {vDQ}, {srd('TMP')}, {sRPS} offen lds", "rpl")
    a.vm(f"buffer_load_dwordx4 {vDQ}, {srd('TMP')}, {sM0} offen offset:1024 lds", "rpl")

def repack_store(a):
    a(f"""
    v_and_b32 v26, 16, {vL}
    v_lshlrev_b32 v27, 1, v26
    v_xor_b32 v27, v14, v27
    s_lshl_b32 {sM0}, {sWID}, 11
    s_add_u32 {sM0}, {sM0}, {L_RP}
    v_add_u32 v27, {sM0}, v27
    v_xor_b32 v28, 64, v27
    """)
    a(f"s_cmp_eq_u32 {sWID}, 0\ns_cbranch_scc1 L_norpl")
    keep = a.vmdone
    a.wait("rpl")
    a.vmdone = keep
    a("L_norpl:")
    a.stamp("_rpl")
    a(f"""
    ds_read_b64_tr_b16 {vr(64,2)}, v27
    ds_read_b64_tr_b16 {vr(66,2)}, v27 offset:512
    ds_read_b64_tr_b16 {vr(68,2)}, v28
    ds_read_b64_tr_b16 {vr(70,2)}, v28 offset:512
    v_and_b32 v72, 0x2f0, {vL16}
    v_lshl_add_u32 v72, v26, 11, v72
    v_mov_b32 v73, {sTAG}
    """)

def repack_out(a, site):
    if a.cfg.get("rp_at", "u1") == site:
        a(f"s_add_u32 {sM0}, {sRPD}, 65536\ns_waitcnt lgkmcnt(0)")
        a.vm(f"buffer_store_dwordx4 {vr(64)}, v72, {srd('WS')}, {sRPD} offen sc1", "rps")
        a.vm(f"buffer_store_dwordx4 {vr(68)}, v72, {srd('WS')}, {sM0} offen sc1", "rps")
    if a.cfg.get("rf_at", "g1") == site:
        a.wait("rps")
        a.vm(f"buffer_store_dword v73, v15, {srd('WS')}, {sRPF} offen sc1", "rfst")

def phase_a(a):
    X, T1, COS, NSIN, SIN, MRE, MIM = 64, 96, 128, 136, 144, 152, 160
    DRE, DIM = 168, 200
    ONE_E, ONE_O, GA, GB, SM = 232, 236, 240, 244, 248
    Stream.cur = None
    Q = lambda h, m: Stream(a, 8, (vDQ, vDQU)[m], ("WG", "WU")[m], f"q{h}", 8 * 3584, 64, 7, h * 256 * 3584, 13, h * L_H1 + m * 32768)
    a.q1g, a.q1u, a.q0g, a.q0u = Q(1, 0), Q(1, 1), Q(0, 0), Q(0, 1)
    a.qe = Chain(a.q0g, a.q0u, a.q1g)
    a.q = Chain(a.q0g, a.q0u, a.q1g, a.q1u)
    qa = [int(c) for c in str(a.cfg.get("qa", "0")).zfill(5)]
    a(f"""
    s_lshl2_add_u32 {sPAIR}, {sP}, {sWID}
    s_lshl1_add_u32 {sT[1]}, {sS2}, {sQ}
    s_lshl_b32 {sT[0]}, {sPAIR}, 8
    s_add_u32 {sT[0]}, {sT[0]}, {sT[1]}
    s_lshl_b32 {sUD}, {sT[0]}, 10
    s_add_u32 {sT[4]}, {sUD}, 0x20000
    s_lshr_b32 {sT[2]}, {sT[1]}, 4
    s_lshl3_add_u32 {sT[2]}, {sPAIR}, {sT[2]}
    s_and_b32 {sT[3]}, {sT[1]}, 15
    s_lshl_b32 {sT[2]}, {sT[2]}, 5
    s_add_u32 {sT[3]}, {sT[3]}, {sT[2]}
    s_lshl_b32 {sT[3]}, {sT[3]}, 10
    s_add_u32 {sT[3]}, {sT[3]}, {HC_OFF}
    s_and_b32 {sT[0]}, {sS2}, 31
    s_sub_u32 {sT[2]}, 32, {sT[0]}
    s_min_u32 {sT[0]}, {sT[0]}, {sT[2]}
    s_lshr_b32 {sT[0]}, {sT[0]}, 3
    s_min_u32 {sT[0]}, {sT[0]}, 1
    s_lshl2_add_u32 {sT[0]}, {sT[0]}, 2
    s_lshl4_add_u32 {sT[2]}, {sQ}, {sPAIR}
    s_lshl_b32 {sMUD}, {sS2}, 10
    s_add_u32 {sMUD}, {sMUD}, {MU_OFF}
    s_cmp_eq_u32 {sT[0]}, {sT[2]}
    s_cselect_b32 {sMUD}, {sMUD}, 0x40000000
    s_add_u32 {sT[2]}, {sUD}, {6 << 17}
    s_cmp_eq_u32 {sPAIR}, 5
    s_cselect_b32 {sT[2]}, {sT[2]}, {sMUD}
    v_mov_b32 v252, -1
    v_mov_b32 v253, -1
    v_mov_b32 v254, -1
    v_mov_b32 v255, -1
    """)
    a(f"s_mov_b32 {sGQ[0]}, {sT[4]}\ns_mov_b32 {sGQ[1]}, {sT[2]}\ns_mov_b32 {sGQ[2]}, {sT[3]}")
    cq = [sUD, sGQ[0], sGQ[1], sGQ[2]]
    cplan = str(a.cfg.get("cplan", "tttt")).zfill(4)
    def clr0(site):
        for c, so in zip(cplan, cq):
            if c == site: a.vm(f"buffer_store_dwordx4 v[252:255], {vL16}, {srd('WS')}, {so} offen sc1", "clr0")
    clr0("i")
    sub = K(a.cfg); late_setup(sub)
    late = [l.strip() for l in sub.lines]
    a("\n".join(late[:6])); late = late[6:]
    warm(a, "xi")
    rps = a.cfg.get("rpl_at", "x7")
    if rps not in ("x7", "B1"):
        a("\n".join(late[:24] + late[-7:])); late = late[24:-7]
    if rps == "xi": repack_load(a)
    a.stamp("_gp")
    a(f"""
    v_mul_u32_u24 v16, {XP}, v6
    s_mul_i32 {sT[0]}, {sWID}, {8*XP}
    s_add_u32 {sT[0]}, {sT[0]}, {LX}
    v_add3_u32 v16, v16, v5, {sT[0]}
    v_and_b32 v9, 1, {vL}
    v_cmp_eq_u32 vcc, 1, v9
    v_mov_b32 v10, 0x3f803f80
    v_cndmask_b32 v{ONE_O}, 0, v10, vcc
    v_xor_b32 v{ONE_E}, v10, v{ONE_O}
    """)
    for d in range(1, 4):
        a(f"v_mov_b32 v{ONE_O+d}, v{ONE_O}\nv_mov_b32 v{ONE_E+d}, v{ONE_E}")
    a(f"""
    s_lshl_b32 {sT[0]}, {sP}, 3
    v_add_u32 v10, {sT[0]}, v3
    v_cvt_f32_u32 v11, v10
    v_mul_f32 v11, {fl(-1/32)}, v11
    v_lshlrev_b32 v12, 3, v4
    v_cvt_f32_u32 v12, v12
    v_mul_f32 v12, v11, v12
    """)
    for j in range(8):
        a(f"v_cos_f32 v{MRE+j}, v12\nv_sin_f32 v{MIM+j}, v12")
        if j < 7: a("v_add_f32 v12, v12, v11")
    a.stamp("_M")
    a(f"""
    v_bfe_u32 v11, {vL}, 3, 1
    v_lshlrev_b32 v11, 17, v11
    v_and_b32 v12, 0x70, {vL16}
    v_lshl_add_u32 v18, v4, 7, v12
    s_lshl_b32 {sT[0]}, {sP}, 8
    v_add3_u32 v18, v18, v11, {sT[0]}
    v_xor_b32 v19, 512, v18
    """)
    for d in range(4):
        a(f"v_cvt_pk_bf16_f32 v{COS+d}, v{MRE+2*d}, v{MRE+2*d+1}\nv_cvt_pk_bf16_f32 v{NSIN+d}, v{MIM+2*d}, v{MIM+2*d+1}")
    a(f"s_mov_b32 {sT[2]}, 0x80000000\ns_mov_b32 {sT[3]}, 0x80008000\ns_mov_b32 {sT[4]}, 0x8000")
    for d in range(4):
        a(f"v_xor_b32 v{COS+4+d}, {sT[2]}, v{COS+d}\nv_xor_b32 v{NSIN+4+d}, {sT[2]}, v{NSIN+d}")
        a(f"v_xor_b32 v{SIN+d}, {sT[3]}, v{NSIN+d}\nv_xor_b32 v{SIN+4+d}, {sT[4]}, v{NSIN+d}")
    clr0("M")
    warm(a, "M")
    if rps == "M": repack_load(a)
    a.stamp("_T2")
    a(f"""
    s_lshl_b32 {sT[0]}, {sQ}, 3
    v_lshrrev_b32 v10, 1, v3
    v_add_u32 v10, {sT[0]}, v10
    v_cvt_f32_u32 v11, v10
    v_mul_f32 v11, {fl(1/512)}, v11
    s_lshl_b32 {sT[0]}, {sWID}, 3
    v_lshl_add_u32 v12, v4, 5, {sT[0]}
    v_cvt_f32_u32 v13, v12
    v_cmp_ne_u32 s[46:47], 0, v12
    v_cvt_f32_u32 v12, v9
    v_mul_f32 v12, {fl(0.25)}, v12
    v_fmac_f32 v12, v11, v13
    v_and_b32 v13, 1, v10
    v_lshlrev_b32 v14, 4, v13
    v_mul_lo_u32 v15, v13, {sT[3]}
    v_bfe_u32 v10, v10, 1, 1
    v_mul_lo_u32 v10, v10, {sT[3]}
    v_lshlrev_b32 v13, 15, v13
    v_xor_b32 v13, v13, v10
    """)
    for j in range(8):
        t = T1 + 4 * j
        a(f"v_cos_f32 v26, v12\nv_sin_f32 v27, v12")
        if j < 7: a("v_add_f32 v12, v12, v11")
        a(f"""
        v_cvt_pk_bf16_f32 v{t}, v26, v27
        v_alignbit_b32 v{t+1}, v{t}, v{t}, v14
        v_xor_b32 v{t+2}, v15, v{t}
        v_xor_b32 v{t+1}, v13, v{t+1}
        v_xor_b32 v{t+3}, v15, v{t+1}
        """)
    a.stamp("_T1")
    a(f"""
    v_cndmask_b32 v{T1}, 0, v{T1}, s[46:47]
    v_lshl_add_u32 v11, v4, 3, v6
    v_mul_u32_u24 v11, {XP}, v11
    v_and_b32 v12, 3, {vL}
    v_lshl_add_u32 v11, v12, 6, v11
    s_lshl_b32 {sT[0]}, {sWID}, 4
    s_add_u32 {sT[0]}, {sT[0]}, {LX}
    v_add_u32 v17, {sT[0]}, v11
    v_lshl_add_u32 v12, v9, 2, v4
    s_lshl_b32 {sT[0]}, {sWID}, 3
    v_add_u32 v12, {sT[0]}, v12
    s_mov_b32 {sT[0]}, {LST}
    v_lshl_add_u32 v13, v12, 1, {sT[0]}
    v_lshl_add_u32 v12, v12, 2, {sT[0]}
    v_lshl_add_u32 v14, v4, 4, {sT[0]}
    v_lshl_add_u32 v15, v4, 5, {sT[0]}
    s_lshl_b32 {sT[0]}, {sWID}, 8
    s_add_u32 {sT[0]}, {sT[0]}, {LH}
    v_lshlrev_b32 v10, 12, v4
    v_lshl_add_u32 v10, v3, 4, v10
    v_add_u32 v10, {sT[0]}, v10
    v_lshrrev_b32 v11, 3, v3
    v_lshlrev_b32 v11, 10, v11
    v_lshl_add_u32 v11, v4, 8, v11
    v_and_b32 v26, 7, {vL}
    v_lshl_add_u32 v11, v26, 5, v11
    s_lshl_b32 {sT[0]}, {sWID}, 11
    s_add_u32 {sT[0]}, {sT[0]}, {LH}
    v_add_u32 v11, {sT[0]}, v11
    """)
    if rps == "t": repack_load(a)
    warm(a, "t")
    clr0("t")
    a(f"s_waitcnt lgkmcnt(0)\ns_add_u32 {sTAG}, {sTAG}, 0x9e3779b9")
    a.stamp("tables")
    for i in range(8):
        a.wait(f"x{i}")
        if i == 0: a.stamp("x0")
        if i == 7: a.stamp("_x7")
        if i == 4: warm(a, "x4")
        g = GA if i < 4 else GB
        a(f"{MF16} {vr(g)}, {vr(X+4*i)}, {vr(X+4*i)}, {vr(g) if i % 4 else 0}")
        a(f"ds_write_b128 v16, {vr(X+4*i)} offset:{(i//4)*4*XP + 256*(i%4)}")
        a(f"{MF16} {vr(SM)}, {vr(X+4*i)}, {vr(ONE_E if i < 4 else ONE_O)}, {vr(SM) if i else 0}")
        clr0(str(i))
        k = -(-len(late) // (8 - i))
        a("\n".join(late[:k])); late = late[k:]
    if rps == "x7": repack_load(a)
    warm(a, "x7")
    for g, t in ((GA, 26), (GB, 27)):
        a(f"v_mov_b32_dpp v{t}, v{g} quad_perm:[0,0,0,0] row_mask:0xf bank_mask:0xf")
    for c in range(1, 4):
        for g, t in ((GA, 26), (GB, 27)):
            a(f"v_add_f32_dpp v{t}, v{g+c}, v{t} quad_perm:[{c},{c},{c},{c}] row_mask:0xf bank_mask:0xf")
        a(f"v_add_f32 v{SM}, v{SM}, v{SM+c}")
    a(f"""
    v_cndmask_b32 v27, v26, v27, vcc
    v_mul_f32 v26, {fl(1/512)}, v{SM}
    v_mul_f32 v27, {fl(1/512)}, v27
    v_fma_f32 v27, -v26, v26, v27
    v_max_f32 v27, 0, v27
    v_add_f32 v27, {fl(1e-5)}, v27
    v_rsq_f32 v27, v27
    v_cvt_pk_bf16_f32 v28, -v26, -v26
    v_lshlrev_b32 v29, 16, v28
    v_add_f32 v29, v29, v26
    v_cvt_pk_bf16_f32 v29, -v29, -v29
    s_mov_b32 exec_lo, 0x00300003
    s_mov_b32 exec_hi, 0x30000300
    ds_write_b32 v12, v27
    ds_write_b16 v13, v28 offset:128
    ds_write_b16 v13, v29 offset:192
    ds_write_b32 v12, v26 offset:256
    s_mov_b64 exec, -1
    """)
    a.qe(qa[0])
    FB = a.cfg.get("fb", 2)
    f1s = lambda: a.vm(f"buffer_store_dword v30, v25, {srd('WS')}, {sT[5]} offen sc1", "f1st")
    if FB == 1:
        a(f"v_mov_b32 v30, {sTAG}"); a.wait("clr0")
    a("s_waitcnt lgkmcnt(0)\ns_barrier")
    a.stamp("B1")
    a(f"""
    ds_read_b128 {vr(32)}, v15
    ds_read_b128 {vr(36)}, v15 offset:16
    ds_read_b128 {vr(40)}, v14 offset:128
    ds_read_b128 {vr(44)}, v14 offset:192
    """)
    def trread(i):
        vv, qq = i // 4, i % 4
        a(f"ds_read_b64_tr_b16 {vr(X+4*i,2)}, v17 offset:{8*vv + 256*qq}")
        a(f"ds_read_b64_tr_b16 {vr(X+4*i+2,2)}, v17 offset:{8*vv + 256*qq + 4*XP}")
    for i in range(5): trread(i)
    if FB == 1: f1s()
    if rps == "B1": repack_load(a)
    warm(a, "B1")
    a.qe(qa[1])
    BRE, BIM, CRE, CIM = 48, 52, 56, 60
    a("s_waitcnt lgkmcnt(12)")
    for j in range(8):
        a(f"v_mul_f32 v{MRE+j}, v{MRE+j}, v{32+j}")
    for d in range(4):
        a(f"v_cvt_pk_bf16_f32 v{BRE+d}, v{MRE+2*d}, v{MRE+2*d+1}")
    a("s_waitcnt lgkmcnt(8)")
    for i in range(5, 8): trread(i)
    a(f"{MF16} {vr(CRE)}, {vr(40)}, {vr(BRE)}, 0")
    for j in range(4): a(f"v_mul_f32 v{MIM+j}, v{MIM+j}, v{32+j}")
    a(f"{MF16} {vr(CRE)}, {vr(44)}, {vr(BRE)}, {vr(CRE)}")
    for j in range(4, 8): a(f"v_mul_f32 v{MIM+j}, v{MIM+j}, v{32+j}")
    for i in range(4):
        a(f"s_waitcnt lgkmcnt({14-2*i})")
        a(f"{MF16} {vr(DRE+4*i)}, {vr(X+4*i)}, {vr(BRE)}, {vr(CRE)}")
        a(f"v_cvt_pk_bf16_f32 v{BIM+i}, v{MIM+2*i}, v{MIM+2*i+1}")
    a(f"{MF16} {vr(CIM)}, {vr(40)}, {vr(BIM)}, 0\n{MF16} {vr(CIM)}, {vr(44)}, {vr(BIM)}, {vr(CIM)}")
    for i in range(4):
        a(f"{MF16} {vr(DIM+4*i)}, {vr(X+4*i)}, {vr(BIM)}, {vr(CIM)}")
    a.qe(qa[2])
    if FB == 3:
        a(f"v_mov_b32 v30, {sTAG}"); a.wait("clr0"); a("s_barrier"); f1s()
    a("s_waitcnt lgkmcnt(0)")
    for i in range(4, 8):
        a(f"{MF16} {vr(DRE+4*i)}, {vr(X+4*i)}, {vr(BRE)}, {vr(CRE)}")
    PA = 64
    def pack(j):
        vv, u = j // 4, j % 4
        return [f"v_cvt_pk_bf16_f32 v{PA+4*j+qq}, v{DRE+4*(4*vv+qq)+u}, v{DIM+4*(4*vv+qq)+u}" for qq in range(4)]
    for i in range(4, 8):
        a(f"{MF16} {vr(DIM+4*i)}, {vr(X+4*i)}, {vr(BIM)}, {vr(CIM)}")
        a("\n".join(pack(i - 4)))
    EE = [152, 156, 160, 164, 232, 236, 240, 244]
    for j in range(4):
        a(f"{MF16} {vr(EE[j])}, {vr(PA+4*j)}, {vr(T1+4*j)}, 0")
        a("\n".join(pack(4 + j)))
    for j in range(4, 8):
        a(f"{MF16} {vr(EE[j])}, {vr(PA+4*j)}, {vr(T1+4*j)}, 0")
    a.qe(qa[3])
    if FB == 4:
        a(f"v_mov_b32 v30, {sTAG}"); a.wait("clr0"); a("s_barrier"); f1s()
    for r in range(4):
        for d in range(4):
            a(f"v_cvt_pk_bf16_f32 v{32+4*r+d}, v{EE[2*d]+r}, v{EE[2*d+1]+r}")
        a(f"ds_write_b128 v10, {vr(32+4*r)} offset:{r*1024}")
    a.qe(qa[4])
    a(f"""
    ds_read_b32 v23, v23
    ds_read_u16 v24, v24
    v_cmp_gt_u32 vcc, 32, {vL}
    s_cmp_eq_u32 {sPAIR}, 4
    v_mov_b32 v30, {sTAG}
    """)
    a.wait("clr0")
    if a.cfg.get("rpl_early", 0): a.wait("rpl")
    a("s_waitcnt lgkmcnt(0)\ns_barrier")
    a.stamp("B2")
    def h2(o, A0, D0):
        return [f"{MF16} {vr(D0)}, {vr(COS+o)}, {vr(A0)}, 0", f"{MF16} {vr(D0+4)}, {vr(NSIN+o)}, {vr(A0)}, 0",
                f"{MF16} {vr(D0)}, {vr(SIN+o)}, {vr(A0+4)}, {vr(D0)}", f"{MF16} {vr(D0+4)}, {vr(COS+o)}, {vr(A0+4)}, {vr(D0+4)}"]
    def out(D0, P0, eb, so):
        return [f"v_cvt_pk_bf16_f32 v{P0+r}, v{D0+r}, v{D0+4+r}" for r in range(4)] + \
               [f"buffer_store_dwordx4 {vr(P0)}, v{18+eb}, {srd('WS')}, {so} offen sc1"]
    a(f"ds_read_b128 {vr(64)}, v11\nds_read_b128 {vr(68)}, v11 offset:16")
    if FB == 2: f1s()
    a("s_cbranch_scc1 L_a_extra\nL_a_main:")
    a(f"v_lshlrev_b32 v24, 16, v24\nv_cndmask_b32 v23, v24, v23, vcc")
    a.vm(f"buffer_store_dword v23, v22, {srd('WS')}, {sMUD} offen sc1", "ust")
    m0, m1 = h2(0, 64, 32), h2(4, 64, 40)
    a("s_waitcnt lgkmcnt(1)\n" + "\n".join(m0[:2]) + "\ns_waitcnt lgkmcnt(0)\n" + "\n".join(m0[2:] + m1))
    for eb in range(2):
        o = out(32 + 8 * eb, 48 + 4 * eb, eb, sUD)
        a("\n".join(o[:4])); a.vm(o[4], "ust")
    t = ["L_a_extra:", f"ds_read_b128 {vr(72)}, v11 offset:8192", f"ds_read_b128 {vr(76)}, v11 offset:8208",
         f"s_add_u32 {sT[0]}, {sUD}, {8 << 17}", "s_waitcnt lgkmcnt(0)"] + h2(0, 72, 168) + h2(4, 72, 176) + ["s_mov_b32 exec_lo, 0x00ff00ff", "s_mov_b32 exec_hi, 0x00ff00ff"]
    t += out(168, 184, 0, sT[0]) + out(176, 188, 1, sT[0]) + ["s_mov_b64 exec, -1", "s_branch L_a_main"]
    a.tail0 = "\n".join(t)
    a.stamp("ust")

FM, UU, ACCB, XX = 96, 128, 32, 160
HA = 128
LE = L_S + 16384

class Stream:
    cur = None
    def __init__(self, a, n, v, mat, tag, step, rows, colshift, colbase, ldsshift, ldsbase):
        self.a, self.n, self.i = a, n, 0
        self.p = (v, mat, tag, step, rows, colshift, colbase, ldsshift, ldsbase)
    def __call__(self, k=1):
        v, mat, tag, step, rows, cs, cb, ls, lb = self.p
        for _ in range(min(k, self.n - self.i)):
            a = self.a
            if Stream.cur is not self:
                dma_setup(a, rows, cs, cb + step * self.i, ls, lb + 1024 * self.i)
                Stream.cur = self; self.k = 0
            elif self.k == 4:
                a(f"s_add_u32 m0, m0, 4096\ns_add_u32 {sSO}, {sSO}, {step + 3072}"); self.k = 0
            else:
                a(f"s_add_u32 {sSO}, {sSO}, {step - 1024}")
            a.vm(f"buffer_load_dwordx4 {v}, {srd(mat)}, {sSO} offen offset:{1024*self.k} lds", tag)
            self.k += 1
            self.i += 1
    def left(self): return self.n - self.i

class Chain:
    def __init__(self, *st): self.st = st
    def __call__(self, k=1):
        for _ in range(k):
            for x in self.st:
                if x.left():
                    x(); break
    def left(self): return sum(x.left() for x in self.st)

def mix(a, lines, every, st):
    for n, l in enumerate(x.strip() for x in lines.strip().split("\n")):
        a(l)
        if n % every == every - 1 and not l.startswith(("s_cmp", "s_bitcmp", "s_cselect")): st()

def window1(a):
    cfg = a.cfg
    w1_addrs(a)
    repack_store(a)
    sw = ScalarWarm(a)
    nop = lambda: None
    mix(a, f"""
    s_cmp_lt_u32 {sWID}, 2
    s_cselect_b32 {sT1C}, {sRBB}, {sT1C}
    s_and_b32 {sT[6]}, {sWID}, 1
    s_lshl_b32 {sT[0]}, {sT[6]}, 10
    s_add_u32 {sT[0]}, {sT[0]}, {sT1C}
    v_and_b32 v3, 31, {vL}
    v_lshrrev_b32 v4, 5, {vL}
    v_lshl_add_u32 v5, v3, 5, {sT[0]}
    s_lshl_b32 {sT[7]}, {sT[0]}, 10
    s_cmp_gt_u32 {sT1C}, 16
    s_cselect_b32 {sT[1]}, 0x80000000, 0
    s_cselect_b32 {sT[2]}, {sRBB}, {sT1C}
    s_cselect_b32 {sT[4]}, -1, 0
    s_or_b32 {sT[1]}, {sT[1]}, {fl(1/2048)}
    v_cvt_f32_u32 v26, v5
    v_mul_f32 v26, {sT[1]}, v26
    s_lshl_b32 {sT[1]}, {sT[6]}, 4
    v_lshl_add_u32 v27, v4, 5, {sT[1]}
    v_xor_b32 v25, 16, v27
    v_cvt_f32_u32 v27, v27
    v_cvt_f32_u32 v25, v25
    v_mul_f32 v27, v26, v27
    v_lshrrev_b32 v17, 2, {vL}
    v_bfe_u32 v18, {vL}, 4, 2
    v_xor_b32 v18, v18, {vL}
    v_and_b32 v18, 3, v18
    v_lshlrev_b32 v18, 5, v18
    v_lshl_add_u32 v76, v17, 15, v18
    s_bfe_u32 {sT[0]}, {sJ}, 0x30001
    s_lshl3_add_u32 {sT[3]}, {sT[0]}, {sQ}
    s_lshl4_add_u32 {sT[0]}, {sT[3]}, {sT[7]}
    s_add_u32 {sT[1]}, {sT[0]}, {16*32768 - 1024}
    s_lshl_b32 {sT[7]}, {sT[3]}, 3
    v_and_b32 v28, 7, {vL}
    v_lshlrev_b32 v28, 7, v28
    v_and_b32 v29, 56, {vL}
    v_lshrrev_b32 v29, 1, v29
    v_add_u32 v24, v28, v29
    v_and_b32 v28, 15, {vL}
    v_and_b32 v29, 16, {vL}
    v_lshl_add_u32 v28, v29, 1, v28
    v_lshl_add_u32 v28, {sT[6]}, 4, v28
    v_and_b32 v29, 63, v5
    v_cmp_gt_u32 vcc, 32, {vL}
    v_cndmask_b32 v19, v29, v28, vcc
    v_lshlrev_b32 v19, 7, v19
    s_lshr_b32 {sT[3]}, {sT[2]}, 1
    s_lshl_b32 {sT[3]}, {sT[3]}, 13
    s_add_u32 {sT[3]}, {sT[3]}, {F1_OFF}
    s_lshl2_add_u32 {sT[2]}, {sT[2]}, {sT[6]}
    s_lshl_b32 {sUD}, {sT[2]}, 15
    s_mov_b32 {sMUD}, {MU_OFF}
    """, 99, nop)
    repack_out(a, "u1")
    a(f"s_waitcnt lgkmcnt(0)\ns_barrier\ns_lshl_b32 {sM0}, {sWID}, 12\ns_add_u32 m0, {sM0}, {LE}")
    a.stamp("_b3")
    warm(a, "u1")
    a.vm(f"buffer_load_dwordx4 v76, {srd('X')}, {sT[0]} offen lds", "xres")
    a.vm(f"buffer_load_dwordx4 v76, {srd('X')}, {sT[1]} offen offset:1024 lds", "xres")
    Stream.cur = None
    a.q(cfg.get("n0", 0))
    mix(a, f"""
    v_cmp_ne_u32 vcc, 0, {vL}
    v_mov_b32 v28, 0x40000000
    v_cndmask_b32 v15, 0, v28, vcc
    v_and_b32 v16, 63, v5
    v_lshlrev_b32 v16, 10, v16
    v_lshrrev_b32 v28, 6, v5
    v_lshl_add_u32 v16, v28, 2, v16
    v_and_b32 v28, 3, v3
    v_and_b32 v29, 4, v3
    v_lshl_or_b32 v28, v29, 2, v28
    v_and_b32 v29, 16, v3
    v_lshl_or_b32 v28, v29, 1, v28
    v_bfe_u32 v29, v3, 3, 1
    v_lshl_or_b32 v28, v29, 2, v28
    v_add_u32 v28, {sT[7]}, v28
    v_xor_b32 v28, {sT[4]}, v28
    v_subrev_u32 v28, {sT[4]}, v28
    v_and_b32 v17, 7, v28
    v_lshlrev_b32 v17, 4, v17
    v_bfe_u32 v29, v28, 3, 1
    v_lshl_add_u32 v17, v29, 10, v17
    v_bfe_u32 v29, v28, 4, 2
    v_lshl_add_u32 v17, v29, 2, v17
    v_bfe_u32 v29, v28, 6, 3
    v_lshl_add_u32 v17, v29, 7, v17
    v_lshl_add_u32 v17, v4, 16, v17
    v_add_u32 v18, 4096, v17
    """, 99, nop)
    def fm(lo, hi, st):
        for d in range(lo, hi):
            a(f"v_cos_f32 v28, v27\nv_sin_f32 v29, v27")
            a("v_mul_f32 v27, v26, v25" if d == 15 else "v_add_f32 v27, v27, v26")
            a(f"v_cvt_pk_bf16_f32 v{FM+d}, v28, v29")
            if d % cfg.get("fm_step", 2) == 0: st()
    n1, n2 = cfg.get("fm1", 8), cfg.get("fm2", 32)
    fm(0, n1, nop)
    f1l = f"buffer_load_dwordx2 v[22:23], v19, {srd('WS')}, {sT[3]} offen sc1"
    a.vm(f1l, "p1")
    a.stamp("_adr")
    a.q(cfg.get("n1", 4))
    fm(n1, n2, nop)
    a.sw = sw
    a.fm_rest = lambda: fm(n2, 32, lambda: None)
    a.stamp("poll1")
    flag_check(a, "p1", [f1l], f"v_xor_b32 v22, {sTAG}, v22\nv_xor_b32 v23, {sTAG}, v23\nv_or_b32 v22, v22, v23\nv_cmp_ne_u32 vcc, 0, v22")
    a.stamp("got1")

def phase_b(a):
    cfg = a.cfg
    ul = []
    for kq in range(4):
        ul += [f"s_add_u32 {sM0}, {sUD}, {8192*kq}"]
        ul += [f"buffer_load_dword v{UU+4*kq+dd}, v{17+dd//2}, {srd('WS')}, {sM0} offen offset:{2048*(dd&1)} sc1" for dd in range(4)]
    ul += [f"buffer_load_dword v7, v16, {srd('WS')}, {sMUD} offen sc1"]
    sub = K(cfg); w1_addrs2(sub)
    oth = [l.strip() for l in sub.lines] if cfg.get("fm2", 32) == 32 else []
    for l in ul:
        a.vm(l, "uu") if l.startswith("buffer") else a(l)
        if oth: a(oth.pop(0))
    f0l = f"buffer_load_dwordx2 v[22:23], v19, {srd('WS')}, {sT[3]} offen sc1"
    a(f"s_lshr_b32 {sT[3]}, {sRB}, 1\ns_lshl_b32 {sT[3]}, {sT[3]}, 13\ns_add_u32 {sT[3]}, {sT[3]}, {F1_OFF}")
    a.vm(f0l, "p0")
    a.fm_rest()
    if cfg.get("fm2", 32) != 32: w1_addrs2(a)
    a.stamp("_ui")
    a.wait("xres")
    a(f"""
    s_lshl_b32 {sT[2]}, {sWID}, 12
    s_add_u32 {sT[0]}, {sT[2]}, {LE}
    v_bfe_u32 v28, v3, 2, 2
    v_xor_b32 v28, v28, v4
    v_lshlrev_b32 v28, 4, v28
    v_lshl_add_u32 v28, v3, 6, v28
    v_add_u32 v28, {sT[0]}, v28
    v_xor_b32 v29, 32, v28
    ds_read_b128 {vr(XX)}, v28
    ds_read_b128 {vr(XX+4)}, v29
    v_add_u32 v30, {sT[0]}, {vL16}
    v_xor_b32 v31, 4096, v30
    s_lshl2_add_u32 {sT[4]}, {sRBB}, {sWID}
    s_and_b32 {sT[5]}, {sJ}, 15
    s_lshl4_add_u32 {sT[0]}, {sT[4]}, {sT[5]}
    s_lshl_b32 {sT[1]}, {sT[0]}, 7
    s_add_u32 {sT[1]}, {sT[1]}, {SS_OFF}
    s_lshr_b32 {sF2B}, {sT[0]}, 2
    s_lshl_b32 {sF2B}, {sF2B}, 5
    s_and_b32 {sT[5]}, {sJ}, 3
    s_add_u32 {sF2B}, {sF2B}, {sT[5]}
    s_lshl_b32 {sF2B}, {sF2B}, 2
    s_add_u32 {sF2B}, {sF2B}, {F2_OFF}
    s_lshl_b32 {sT[0]}, {sT[4]}, 9
    s_add_u32 {sT[0]}, {sT[0]}, {sT[7]}
    s_lshl_b32 {sT[0]}, {sT[0]}, 6
    s_add_u32 {sT[0]}, {sT[0]}, {HC_OFF}
    v_lshl_add_u32 v74, v4, 9, {vL16}
    v_mov_b32 v26, 0
    v_lshlrev_b32 v75, 2, {vL}
    """)
    repack_out(a, "g1")
    warm(a, "b1")
    a("s_waitcnt lgkmcnt(0)")
    for d in range(8):
        a(f"v_lshlrev_b32 v{ACCB+2*d}, 16, v{XX+d}\nv_and_b32 v{ACCB+2*d+1}, 0xffff0000, v{XX+d}")
    a.q(cfg.get("n2", 4))
    a.stamp("_pre")
    checked(a, "uu", ul, list(range(UU, UU + 16)) + [7])
    a.stamp("_u3")
    a.q(cfg.get("n3", 4))
    for kq in range(4):
        a(f"ds_write_b128 v30, {vr(UU+4*kq)} offset:{1024*kq}")
        for d in range(4 * kq, 4 * kq + 4): a(f"v_sub_f32 v{ACCB+d}, v{ACCB+d}, v7")
    a(f"{MF32} {vr(ACCB,16)}, {vr(UU)}, {vr(FM)}, {vr(ACCB,16)}")
    flag_check(a, "p0", [f0l], f"v_xor_b32 v22, {sTAG}, v22\nv_xor_b32 v23, {sTAG}, v23\nv_or_b32 v22, v22, v23\nv_cmp_ne_u32 vcc, 0, v22")
    a("s_waitcnt lgkmcnt(0)\ns_barrier")
    a.stamp("_bx")
    for kq in range(4):
        a(f"ds_read_b128 {vr(UU+16+4*kq)}, v31 offset:{1024*kq}")
    for kq in range(1, 8):
        if kq >= 4: a(f"s_waitcnt lgkmcnt({7-kq})")
        a(f"{MF32} {vr(ACCB,16)}, {vr(UU+4*kq)}, {vr(FM+4*kq)}, {vr(ACCB,16)}")
        if kq <= cfg.get("n4", 7): a.q()
    a(f"""
    s_mul_i32 {sRPS}, {sCB}, 3
    s_lshr_b32 {sT[4]}, {sRPS}, 2
    s_add_u32 {sT[5]}, {sRPS}, 2
    s_lshr_b32 {sT[5]}, {sT[5]}, 2
    s_lshl_b32 {sT[4]}, {sT[4]}, 10
    s_lshl_b32 {sT[5]}, {sT[5]}, 10
    s_add_u32 {sUD}, {sT[4]}, {RF_OFF}
    s_add_u32 {sMUD}, {sT[5]}, {RF_OFF}
    s_lshl_b32 {sRPS}, {sRPS}, 15
    s_add_u32 {sRPS}, {sRPS}, {sT[2]}
    s_add_u32 {sRPS}, {sRPS}, {RP_OFF}
    """)
    for ks in range(2):
        for d in range(4):
            a(f"v_cvt_pk_bf16_f32 v{48+4*ks+d}, v{ACCB+8*ks+2*d}, v{ACCB+8*ks+2*d+1}")
        a.vm(f"buffer_store_dwordx4 {vr(48+4*ks)}, v74, {srd('WS')}, {sT[0]} offen offset:{2048*ks} sc1", "hst")
    a.stamp("hst")
    repack_out(a, "h1")
    for d in range(8):
        a(f"v_dot2c_f32_bf16 v26, v{48+d}, v{48+d}")
    a("v_mov_b32 v27, v26\nv_permlane32_swap_b32 v26, v27\nv_add_f32 v26, v26, v27\ns_mov_b32 exec_hi, 0")
    a.vm(f"buffer_store_dword v26, v75, {srd('WS')}, {sT[1]} offen sc1", "hst")
    a(f"s_mov_b64 exec, -1\ns_mov_b32 {sRPD}, {sT[2]}")

def epi_block(a, acc, dst):
    o = []
    for j in range(0, 8, 2):
        t0, t1 = 26, 27
        g0, g1, u0, u1 = acc + j, acc + j + 1, acc + 8 + j, acc + 9 + j
        o += [f"v_mul_f32 v{t0}, v16, v{g0}", f"v_mul_f32 v{t1}, v16, v{g1}",
              f"v_exp_f32 v{t0}, v{t0}", f"v_exp_f32 v{t1}, v{t1}",
              f"v_mul_f32 v{u0}, v{g0}, v{u0}",
              f"v_fma_f32 v{t0}, v{t0}, v17, v17", f"v_fma_f32 v{t1}, v{t1}, v17, v17",
              f"v_rcp_f32 v{t0}, v{t0}", f"v_rcp_f32 v{t1}, v{t1}",
              f"v_mul_f32 v{u1}, v{g1}, v{u1}",
              f"v_mul_f32 v{u0}, v{u0}, v{t0}", f"v_mul_f32 v{u1}, v{u1}, v{t1}",
              f"v_cvt_pk_bf16_f32 v{dst + j//2}, v{u0}, v{u1}"]
    return [(cost(l), l) for l in o]

def slow_path(a, name, loads, chk):
    t = [f"L_{name}_slow:", f"s_mov_b32 {sT[8]}, 0", f"L_{name}_lp:", "s_nop 15"] + loads
    if a.cfg.get("stamps"): t += [f"s_or_b32 s100, s100, {1 << len(a.tail)}"]
    t += [f"s_add_u32 {sT[8]}, {sT[8]}, 1", "s_waitcnt vmcnt(0)", chk, f"s_cmp_gt_u32 {sT[8]}, {SPIN}", f"s_cbranch_scc1 L_{name}_ok",
          f"s_cbranch_vccnz L_{name}_lp", f"s_branch L_{name}_ok"]
    a.tail.append("\n".join(t))

def sentinel(regs, tmp):
    rs = list(regs)
    chk = [f"v_max3_u32 v{tmp}, v{rs[0]}, v{rs[1]}, v{rs[2]}"]
    for i in range(3, len(rs), 2):
        chk.append(f"v_max3_u32 v{tmp}, v{tmp}, v{rs[i]}, v{rs[min(i+1, len(rs)-1)]}")
    return "\n".join(chk + [f"v_cmp_eq_u32 vcc, -1, v{tmp}"])

def check1(a, name, chk):
    assert not a.vcc_busy, (a.vcc_busy, name)
    a.wait(name); a(chk); a.vcc_busy = name

def check2(a, name, loads, chk):
    a(f"s_cbranch_vccnz L_{name}_slow\nL_{name}_ok:")
    a.vcc_busy = None
    slow_path(a, name, loads, chk)

def flag_check(a, name, loads, chk):
    check1(a, name, chk); check2(a, name, loads, chk)

def checked(a, name, loads, regs, tmp=28):
    flag_check(a, name, loads, sentinel(regs, tmp))

class Repacked:
    def __init__(self, a): self.a, self.i = a, 0
    def __call__(self, k=1):
        a = self.a
        for _ in range(min(k, 24 - self.i)):
            g, n = self.i // 4, self.i % 4
            x, hh = g // 2, g % 2
            if n == 0 or Stream.cur is not self:
                a(f"s_add_u32 m0, {sRPD}, {(L_S, 0, 32768)[x] + 16384 * hh}\ns_add_u32 {sSO}, {sRPS}, {32768 * x + 16384 * hh}")
                Stream.cur = self
            a.vm(f"buffer_load_dwordx4 {vL16}, {srd('WS')}, {sSO} offen offset:{1024*n} sc1 lds", "rp" + "XYZ"[x])
            self.i += 1
    def left(self): return 24 - self.i

def ffn(a):
    cfg = a.cfg
    sHC = sT[6]
    a(f"""
    s_lshl_b32 {sT[0]}, {sR}, 9
    s_add_u32 {sT[3]}, {sT[0]}, {F2_OFF}
    s_lshr_b32 {sT[1]}, {sCB}, 2
    s_lshl_b32 {sT[1]}, {sT[1]}, 7
    s_and_b32 {sT[2]}, {sCB}, 3
    s_lshl2_add_u32 {sT[1]}, {sT[2]}, {sT[1]}
    s_add_u32 {sF2}, {sT[3]}, {sT[1]}
    s_mov_b32 {sRPF}, {sT[3]}
    v_mov_b32 v30, {sTAG}
    v_bfe_u32 v19, {vL}, 2, 2
    v_lshlrev_b32 v19, 7, v19
    v_and_b32 v26, 3, {vL}
    v_lshl_add_u32 v19, v26, 2, v19
    s_and_b32 {sT[1]}, {sT[1]}, 0x180
    v_lshl_add_u32 v18, v26, 2, {sT[1]}
    s_lshl_b32 {sHC}, {sR}, 15
    s_add_u32 {sHC}, {sHC}, {HC_OFF}
    """)
    HS = 1
    rp = Repacked(a)
    nA = [0]
    def a_load():
        ks = nA[0]
        a.vm(f"buffer_load_dwordx4 {vr(HA+4*ks)}, {vL16}, {srd('WS')}, {sHC} offen offset:{1024*(ks%4)} sc1", f"ag{ks//4}" if ks < 16 else f"a{ks}")
        if ks % 4 == 3: a(f"s_add_u32 {sHC}, {sHC}, 4096")
        nA[0] += 1
    APD = cfg.get("apd", 8)
    a(f"s_mov_b32 {sWRM}, {sHC}")
    fl_rf = [f"buffer_load_dword v{22+i}, v24, {srd('WS')}, {(sUD, sMUD)[i]} offen sc1" for i in range(2)]
    for l in fl_rf: a.vm(l, "rf")
    a.q(cfg.get("n5", 5))
    a.q0g(8); a.q0u(8)
    a.wait("hst")
    a.stamp("got2")
    a.vm(f"buffer_store_dword v30, v15, {srd('WS')}, {sF2B} offen sc1", "f2st")
    a.q(cfg.get("n6", 0))
    for _ in range(APD): a_load()
    a.stamp("_ai")
    flag_check(a, "rf", fl_rf, "v_xor_b32 v22, v30, v22\nv_xor_b32 v23, v30, v23\nv_or_b32 v22, v22, v23\nv_cmp_ne_u32 vcc, 0, v22")
    a.wait("q0")
    a("s_barrier")
    a.stamp("_b5")
    a(f"s_or_b32 {sT[0]}, s2, {sWID}\ns_cbranch_scc1 L_noep\ns_mov_b32 {sT[0]}, {EP_OFF}")
    a.vm(f"buffer_store_dword v30, v15, {srd('WS')}, {sT[0]} offen sc1", "ep", cond=True)
    a("L_noep:")

    ACC = {0: 32, 1: 48, 2: 64, 3: 80, "X": 96, "Y": 32, "Z": 48}
    OWN = {0: 112, 1: 116, 2: 120, 3: 124, "X": 22, "Y": 32, "Z": 48}
    GST = {0: (sGQ, 0), 1: (sGQ, 1), 2: (sGQ, 2), 3: (sGQ, 3), "X": (sGP, 0), "Y": (sGP, 1), "Z": (sGP, 2)}
    BLK = [0, 1, 2, 3, "X", "Y", "Z"]
    RING = cfg.get("ring", 44)
    GF = {(b, sg): ar(4 * RING + 12 * bi + 4 * (sg - 1)) for bi, b in enumerate(BLK[:5]) for sg in (1, 2, 3)}
    assert 4 * RING + 60 <= 256
    GV = {(b, sg): HA + 12 * bi + 4 * (sg - 1) for bi, b in enumerate("YZ") for sg in (1, 2, 3)}
    for k, v in GV.items(): GF[k] = vr(v)
    for b in BLK: GF[(b, 0)] = vr(OWN[b])
    ACC2 = {1: 64, 2: 80, 3: 96, 0: 224}
    RQ2 = vRQ
    vDW, vTG, SEL, HR, PF = "v13", "v21", 240, 248, 160
    sWDb = [sT[1], sT[2], sT[3], sT[4]]
    seq = []
    KS0 = cfg.get("ks0", 22)
    for b, ks in [(b, ks) for ks in range(KS0) for b in range(4)] + [(b, ks) for b in range(4) for ks in range(KS0, 32)]:
        e = dict(acc=ACC[b], b=vr(HA + 4 * ks), first=ks == 0, vw=ks if b == 0 else None,
                 rd=(vRQ[b], 2048 * (ks % 16), vRQ[b], 2048 * (ks % 16) + 512))
        if ks == 16: e["bump"] = L_H1
        seq.append(e)
    lastof = {b: max(i for i, e in enumerate(seq) if e["acc"] == ACC[b]) for b in range(4)}
    for b, v, o in (("X", 12, 0), ("Y", 2, 0), ("Z", 2, 32768)):
        for ks in range(32):
            seq.append(dict(acc=ACC[b], rd=(v, o + 1024 * ks), b=vr(HA + 4 * ks), first=ks == 0))
    seq[160]["mark"] = ["e0"]; seq[192]["mark"] = ["e1"]
    N1 = len(seq)
    order = ([(b, 0) for b in (0, 1, 2, 3)] + [(b, sg) for b in (0, 1, 2, 3) for sg in (1, 2, 3)]
             + [(b, sg) for b in "XYZ" for sg in (0, 1, 2, 3)])
    H, PS = cfg.get("hoist", 0), cfg.get("ps", 16)
    g2 = [(p, s) for p in range(PS) for s in (1, 2, 3)] + [(p, 0) for p in range(H)]
    g2 += [(p, s) for s in (1, 2, 3) for p in range(PS, 28)] + [(p, 0) for p in range(H, 28)]
    fin, chk_at = {}, {}
    for p, s_ in g2:
        k = order[p]; o = 4096 * (p if p < 16 else p % 8)
        e = dict(acc=ACC2[s_], rd=(RQ2[s_], o, RQ2[s_], o + 1024), b=GF[k], first=p == 0 and s_ > 0,
                 bump={16: 65536, 24: -131072}.get(p))
        if s_ == 1 and k[1] == 1: chk_at[k[0]] = len(seq)
        if s_ == 1 and k[1] == 0: e["mark"] = [f"e{k[0]}"]
        if p == 0: e["mark"] = e.get("mark", []) + [{1: "e2", 2: "e3", 3: "eX", 0: "init0"}[s_]]
        if p == 27: fin[s_] = len(seq)
        seq.append(e)
    NS = len(seq)
    first16 = min(i for i in range(N1, NS) if g2[i - N1][0] >= 16)
    PD = 5
    BQ, BX, BY, BW0, BW1 = cfg.get("bq", 44), cfg.get("bx", 120), cfg.get("by", 154), cfg.get("bw0", 206), cfg.get("bw1", first16 - 10)
    gate = {64: BQ, 128: BX, 160: BY, N1: BW0, first16: BW1}
    for n, t in gate.items(): assert t <= n - PD - 1
    issued, comp, nrd = [0], [-1], []
    def lg_wait(upto):
        n = sum(nrd[upto + 1:])
        a(f"s_waitcnt lgkmcnt({min(n, 15)})")
        comp[0] = upto
    def read_one():
        n = issued[0]; e = seq[n]; d = 4 * (n % RING)
        if sum(nrd[comp[0] + 1:]) > 12: lg_wait(n - 4)
        if len(e["rd"]) == 2:
            a(f"ds_read_b128 {ar(d)}, v{e['rd'][0]} offset:{e['rd'][1]}")
        else:
            v0, o0, v1, o1 = e["rd"]
            if e.get("bump"): a(f"v_add_u32 v{v0}, {hex(e['bump'] & 0xffffffff)}, v{v0}")
            a(f"ds_read_b64_tr_b16 {ar(d,2)}, v{v0} offset:{o0}\nds_read_b64_tr_b16 {ar(d+2,2)}, v{v1} offset:{o1}")
        nrd.append(len(e["rd"]) // 2)
        issued[0] += 1
    def may_run_ahead(i):
        n = issued[0]
        return n < NS and n <= i + RING - 2 and gate.get(n, -9) <= i and (n < N1 or "rq2" in done)
    fill, at, done, cur = [], {}, set(), [0]
    vq, backlog = [], [0]
    def when(i, fn): at.setdefault(i, []).append(fn)
    def lines(txt): return [(cost(l.strip()), l.strip()) for l in txt.strip().split("\n")]
    def mark(m): return [(0, lambda: done.add(m))]
    def pop():
        c, it = fill.pop(0)
        it() if callable(it) else a(it)
    def vput(earliest, deadline, pipe, fn, key=None): vq.append([deadline, len(vq) + 1000 * cur[0], earliest, pipe, fn, key])
    def vrun(it):
        vq.remove(it); it[4](); backlog[0] += it[3]
        if cfg.get("verbose"): print(f"  i={cur[0]} vmem {it[5]} backlog={backlog[0]}", file=sys.stderr)
    def vforce(key):
        for it in sorted(vq):
            if it[5] == key: vrun(it)
    def store(l, tag):
        def f():
            a.vm(l, tag); backlog[0] += cfg.get("c_st", 64)
        return (8, f)
    def split_check(i, name, loads, chk, pre=None, after=None):
        def one():
            if a.vcc_busy: return split_check(cur[0] + 1, name, loads, chk, pre, after)
            if pre: pre()
            check1(a, name, chk)
            when(cur[0] + 1, lambda: (check2(a, name, loads, chk), done.add("c" + name), after and after()))
        when(i, one)
    def barrier(t, key, freed):
        def f():
            if key: vforce(key); a.wait(key)
            if freed is not None:
                assert freed <= t + RING - 2
                while issued[0] <= freed: read_one()
                if comp[0] < freed: lg_wait(freed)
            a("s_barrier")
        when(t, f)
    nwd = [0]
    def wd_dma():
        b, sg = order[nwd[0]]
        s_, off = GST[b]
        if Stream.cur != "wd" or nwd[0] == 24:
            a(f"s_lshl_b32 {sM0}, {sWID}, 10\ns_add_u32 m0, {sM0}, {L_H1 + 4096*nwd[0] if nwd[0] < 24 else 4096*(nwd[0]-24)}")
            Stream.cur = "wd"
        a(f"s_lshl4_add_u32 {sSO}, {s_[sg]}, {sWDb[off]}")
        a.vm(f"buffer_load_dwordx4 {vDW}, {srd('WD')}, {sSO} offen lds", "wd0" if nwd[0] < 16 else "wd1")
        a("s_add_u32 m0, m0, 4096")
        nwd[0] += 1
    def g_lines(b):
        s_, off = GST[b]
        return [f"buffer_load_dwordx4 {GF[(b,sg)]}, {vL16}, {srd('WS')}, {s_[sg]} offen offset:{1024*off} sc1" for sg in (1, 2, 3)]
    CL = cfg.get("c_ld", 70)
    DA, DB, DC, D1 = cfg.get("da", 28), cfg.get("db", 14), cfg.get("dc", 24), cfg.get("d1", 20)
    STG = {"a": [[0, 1], [2, 3], ["X"]], "b": [[0, 1, 2], [3, "X"]], "c": [[0, 1], [2, 3, "X"]]}[cfg.get("stg", "a")]
    def g_queue(b, t0):
        for n, l in enumerate(g_lines(b)):
            vput(t0, chk_at[b] - 24, CL, lambda l=l, b=b: a.vm(l, f"g{b}"), f"g{b}")
    def stage(k):
        fr = 28 + (k & 1)
        ld = f"buffer_load_dword v{fr}, v18, {srd('WS')}, {sRPF} offen offset:{16*(k+1)} sc1"
        if k == 0: vforce("clr")
        if cfg.get("verbose"): print(f"  i={cur[0]} vmem stage{k}", file=sys.stderr)
        t2 = min(cur[0] + DA + DB + DC, chk_at[STG[k][0]] - 4)
        t0 = min(cur[0] + DA, t2 - 2); t1 = max(t0 + 1, min(cur[0] + DA + DB, t2 - 1))
        when(t0, lambda: (a.wait(f"gst{STG[k][-1]}", "clr"),
                          a.vm(f"buffer_store_dword v30, v15, {srd('WS')}, {sF2} offen offset:{16*(k+1)} sc1", "f3st")))
        when(t1, lambda: a.vm(ld, f"f3{k}"))
        split_check(t2, f"f3{k}", [ld], f"v_cmp_ne_u32 vcc, v30, v{fr}", after=lambda: [g_queue(b, 0) for b in STG[k]])
    def epi(b):
        s_, off = GST[b]
        post = [(0, lambda k=k: stage(k)) for k in range(len(STG)) if b == STG[k][-1]]
        if b in ("Y", "Z"): post = [(0, lambda: g_queue(b, cur[0] + D1))]
        return (epi_block(a, ACC[b], OWN[b])
                + [store(f"buffer_store_dwordx4 {vr(OWN[b])}, {vL16}, {srd('WS')}, {s_[0]} offen offset:{1024*off} sc1", f"gst{b}")]
                + post + mark(f"e{b}"))
    for b in BLK:
        e = seq[chk_at[b]]
        if b in ("Y", "Z"):
            def pre(b=b):
                while f"e{b}" not in done: pop()
                assert "cf30" in done
                vforce(f"g{b}")
            split_check(chk_at[b] - 3, f"g{b}", g_lines(b), sentinel([GV[(b, sg)] for sg in (1, 2, 3)], 31), pre=pre)
            e["need"] = f"cg{b}"
        else:
            e["need"] = f"cf3{[b in st for st in STG].index(True)}"; e["gw"] = f"g{b}"
    F2P = cfg.get("f2p", 12)
    F2C = F2P + cfg.get("f2d", 24)
    f2l = f"buffer_load_dword v29, v19, {srd('WS')}, {sRPF} offen sc1"
    use = {e["vw"]: i for i, e in enumerate(seq) if e.get("vw") is not None}
    sSS = sT[7]
    def after_f2():
        for ks in range(16, 32): vput(0, use[ks] - 30, cfg.get("c_a", CL), a_load, f"a{ks}")
        for c in range(8):
            vput(0, lastof[0] - 40, 40, lambda c=c: a.vm(f"buffer_load_dword v{120+c}, v16, {srd('WS')}, {sSS} offen offset:{128*c} sc1", "ss"), "ss")
        vput(0, lastof[0] - 40, 40, lambda: a.vm(f"buffer_load_dword v6, v17, {srd('WS')}, {sT[5]} offen offset:128 sc1", "ss"), "ss")
    when(F2P, lambda: a.vm(f2l, "f2c"))
    split_check(F2C, "f2c", [f2l], "v_cmp_ne_u32 vcc, v30, v29", after=after_f2)
    for ks in range(APD, 16): vput(0, use[ks] - 30, cfg.get("c_a", CL), a_load, f"a{ks}")
    def ag(g):
        return (f"ag{g}", [f"s_add_u32 {sM0}, {sWRM}, {4096*g}"] +
                [f"buffer_load_dwordx4 {vr(HA+16*g+4*n)}, {vL16}, {srd('WS')}, {sM0} offen offset:{1024*n} sc1" for n in range(4)],
                sentinel([HA + 16 * g + 4 * n for n in range(4)], 31))
    for g in (1, 2, 3):
        split_check(16 * g - 3, *ag(g), pre=lambda g=g: [vforce(f"a{k}") for k in range(4 * g, 4 * g + 4)])
        seq[16 * g]["need"] = f"cag{g}"
    for n in range(a.q.left()): vput(0, BQ - 12, cfg.get("c_w", 68), a.q, "q1")
    for n in range(rp.i, 24): vput((0, BQ + 1, BQ + 1)[n // 8], (BX - 30, BY - 30, BY - 30)[n // 8], cfg.get("c_rp", 70), rp, "rp" + "XZZ"[n // 8])
    for n in range(2):
        vput(cfg.get("clr0", 76) + cfg.get("clrs", 10) * n, 90, cfg.get("c_st", 64),
             lambda n=n: a.vm(f"buffer_store_dwordx4 {vr(NEG)}, {vL16}, {srd('WS')}, {sGP[0]} offen offset:{1024*(n+1)} sc1", "clr"), "clr")
    for p in range(28):
        vput(1 + (BX if p < 16 else BY if p < 24 else BW0), (BW0 if p < 16 else BW1) - 18, cfg.get("c_w", 68), wd_dma, "wd0" if p < 16 else "wd1")
    barrier(BQ, "q1", 63); barrier(BX, "rpX", 127); barrier(BY, "rpZ", 159)
    barrier(BW0, "wd0", 191); barrier(BW1, "wd1", None)
    sub = K(cfg); gp_setup(sub)
    pre_stream = [l.strip() for l in sub.lines] + [f"v_mov_b32 v{NEG+d}, -1" for d in range(4)] + [l for _, l in lines(f"""
        s_sub_u32 {sT[0]}, 32, {sRB}
        s_cmp_eq_u32 {sRB}, 0
        s_cselect_b32 {sT[0]}, 16, {sT[0]}
        s_cmp_lt_u32 {sWID}, 2
        s_cselect_b32 {sT[0]}, {sRB}, {sT[0]}
        s_and_b32 {sT[5]}, {sWID}, 1
        s_lshl_b32 {sT[5]}, {sT[5]}, 10
        s_add_u32 {sT[0]}, {sT[0]}, {sT[5]}
        v_lshl_add_u32 v5, v3, 5, {sT[0]}
        v_lshlrev_b32 v7, 10, v5
        v_and_b32 v17, 0xfc00, v7
        v_lshrrev_b32 v26, 6, v5
        v_lshl_add_u32 v17, v26, 2, v17
        s_mov_b32 {sT[5]}, {MU_OFF}
        s_lshl_b32 {sSS}, {sR}, 11
        s_add_u32 {sSS}, {sSS}, {SS_OFF}
        v_lshlrev_b32 v16, 2, v3
        v_lshl_add_u32 v16, v4, 10, v16
        v_lshrrev_b32 v26, 4, {vL}
        v_and_b32 v27, 15, {vL}
        v_lshlrev_b32 v28, 2, v26
        v_xor_b32 v27, v27, v28
        v_lshlrev_b32 v27, 4, v27
        v_lshl_add_u32 {vDW}, v26, 10, v27
        s_mul_i32 {sT[0]}, {sR}, {GR}
        s_add_u32 {sT[0]}, {sT[0]}, {G_OFF}
        s_lshl_b32 {sT[0]}, {sT[0]}, 4
        s_lshl_b32 {sWDb[0]}, {sWID}, 12
        s_sub_u32 {sWDb[0]}, {sWDb[0]}, {sT[0]}
        s_and_b32 {sT[0]}, {sCB}, 3
        s_lshl_b32 {sT[0]}, {sT[0]}, 8
        s_add_u32 {sWDb[0]}, {sWDb[0]}, {sT[0]}
        s_add_u32 {sWDb[1]}, {sWDb[0]}, 16384
        s_add_u32 {sWDb[2]}, {sWDb[0]}, 32768
        s_add_u32 {sWDb[3]}, {sWDb[0]}, 49152
        s_lshl2_add_u32 s28, {sJ}, {sWID}
        s_cmp_lt_u32 s28, 64
        s_cselect_b32 {sM0}, 0, 192
        s_cselect_b32 s30, 64, 48
        s_lshr_b32 s29, {sXCD}, 1
        s_mul_i32 s29, s29, s30
        s_add_u32 s29, s29, {sM0}
        s_add_u32 s29, s29, s28
        s_cmp_lt_u32 s28, 112
        s_cselect_b32 s29, s29, 0x1000
        s_lshl_b32 {sT1C}, s29, 12
        v_cmp_gt_u32 vcc, 32, {vL}
        v_lshlrev_b32 v100, 7, {vL}
        v_cndmask_b32 v100, v15, v100, vcc
        """)]
    if cfg.get("d0", 20) >= 0:
        when(cfg.get("d0", 20), lambda: a.vm(f"buffer_load_dword v0, v100, {srd('WD')}, {sT1C} offen", "warm"))
    def stats():
        vforce("ss")
        fill.extend([(4, lambda: a.wait("ss"))] + lines(f"""
        v_lshlrev_b32 v26, 16, v{HA}
        v_lshlrev_b32 v27, 16, v{HA}
        v_add_f32 v120, v120, v121
        v_add_f32 v122, v122, v123
        v_permlane32_swap_b32 v26, v27
        v_sub_f32 v6, v6, v26
        v_add_f32 v124, v124, v125
        v_add_f32 v126, v126, v127
        v_add_f32 v120, v120, v122
        v_add_f32 v124, v124, v126
        v_add_f32 v16, v120, v124
        v_mov_b32 v17, v16
        v_mov_b32 v26, {fl(1e-5)}
        v_permlane32_swap_b32 v16, v17
        v_add_f32 v16, v16, v17
        v_fmamk_f32 v17, v16, {fl(1/512)}, v26
        v_rsq_f32 v16, v17
        v_mul_f32 v16, {fl(-1.4426950408889634)}, v16
        """))
    when(lastof[0] - 4, stats)
    for b in range(4):
        when(lastof[b] + 2, lambda b=b: fill.extend(epi(b)))
    when(127, lambda: a.stamp("quad"))
    when(161, lambda: fill.extend(epi("X") + lines(f"""
        v_bfe_u32 v26, {vL}, 2, 2
        v_lshlrev_b32 v8, 6, v26
        v_lshl_add_u32 v26, v4, 3, v26
        v_lshl_add_u32 v8, v26, 8, v8
        v_and_b32 v27, 24, v14
        v_and_b32 v26, 16, {vL}
        v_lshl_add_u32 v27, v26, 1, v27
        v_add_u32 v8, v8, v27
        s_lshr_b32 {sT[0]}, {sCB}, 2
        s_lshl_b32 {sT[0]}, {sT[0]}, 6
        v_xor_b32 v8, {sT[0]}, v8
        v_add_u32 v8, {L_H1}, v8
        v_xor_b32 v9, 64, v8
        v_xor_b32 v10, 128, v8
        v_xor_b32 v11, 192, v8
        v_and_b32 {vTG}, 0x10001, v30
        """) + mark("rq2")))
    seq[N1 - PD - 1].setdefault("mark", []).append("rq2")
    when(193, lambda: fill.extend(epi("Y")))
    sOC = sT[5]
    def after_g1():
        a.stamp("g1end")
        fill.extend(epi("Z"))
        fill.extend(lines("\n".join(f"v_mov_b32 v{224+d}, v6" for d in range(16))) + mark("init0"))
        fill.extend(lines(f"""
        s_and_b32 {sT[0]}, {sCB}, 3
        s_lshr_b32 {sOC}, {sCB}, 2
        s_lshl2_add_u32 {sOC}, {sT[0]}, {sOC}
        s_lshl_b32 {sT[0]}, {sOC}, 11
        s_add_u32 {sHC}, {sT[0]}, {sWRM}
        """))
        fill.append((0, lambda: [vput(0, NS - 40, CL, lambda ks=ks: a.vm(
            f"buffer_load_dwordx4 {vr(HR+4*ks)}, {vL16}, {srd('WS')}, {sHC} offen offset:{1024*ks} sc1", "res"), "res") for ks in range(2)]))
        fill.extend(lines(f"""
        s_lshl_b32 {sOC}, {sOC}, 6
        s_mov_b32 s29, 0xfffefffe
        v_bfe_u32 v26, {vL}, 2, 1
        v_cmp_eq_u32 s[30:31], v26, v4
        v_and_b32 v26, 1, {vL}
        v_lshlrev_b32 v26, 4, v26
        v_mov_b32 v27, 0x3f80
        v_lshlrev_b32 v26, v26, v27
        v_cndmask_b32 v26, 0, v26, s[30:31]
        v_bfe_u32 v27, {vL}, 1, 1
        v_bfe_u32 v{SEL}, {vL}, 3, 2
        v_lshl_or_b32 v27, v{SEL}, 1, v27
        v_lshl_add_u32 v5, v4, 4, v7
        """))
        if cfg.get("otr", 1):
            fill.extend(lines(f"""
            s_lshl_b32 {sT[0]}, {sWID}, 11
            s_add_u32 {sT[0]}, {sT[0]}, 32768
            v_bfe_u32 v16, v3, 1, 2
            v_xor_b32 v16, v16, v4
            v_lshlrev_b32 v16, 4, v16
            v_lshl_add_u32 v16, v3, 6, v16
            v_add_u32 v16, {sT[0]}, v16
            v_xor_b32 v17, 32, v16
            v_add_u32 v200, {sT[0]}, {vL16}
            v_bfe_u32 v201, {vL}, 3, 2
            v_xor_b32 v201, v201, {vL}
            v_and_b32 v201, 3, v201
            v_lshrrev_b32 v202, 2, {vL}
            v_sub_u32 v202, v202, v3
            v_lshl_add_u32 v5, v202, 15, v7
            v_lshl_add_u32 v5, v201, 4, v5
            s_add_u32 s28, {sOC}, {16*32768}
            """))
        pr = ["s[30:31]", "s[60:61]", "s[62:63]"]
        for d in range(10):
            if d < 8: fill.extend(lines(f"v_cmp_eq_u32 {pr[d%3]}, {d}, v27"))
            if d > 1: fill.extend(lines(f"v_cndmask_b32 v{SEL+d-2}, 0, v26, {pr[(d-2)%3]}"))
    when(N1 + 1, after_g1)
    def p_lines(s_):
        return [f"buffer_load_dwordx4 {vr(PF+8*(s_-1)+4*ks)}, {vL16}, {srd('WS')}, {sPIN if s_ < 3 else sPIN2} offen offset:{(2048*(s_-1)+1024*ks) % 4096} sc1" for ks in range(2)]
    def p_chk(s_):
        r = PF + 8 * (s_ - 1)
        return "\n".join([f"v_xor_b32 v{r+d}, {vTG}, v{r+d}" for d in range(8)] +
                         [f"v_or3_b32 v31, v{r}, v{r+1}, v{r+2}", f"v_or3_b32 v31, v31, v{r+3}, v{r+4}", f"v_or3_b32 v31, v31, v{r+5}, v{r+6}",
                          f"v_or_b32 v31, v31, v{r+7}", "v_and_b32 v31, 0x10001, v31", "v_cmp_ne_u32 vcc, 0, v31"])
    ploaded = set()
    def p_load(s_):
        if s_ not in ploaded:
            ploaded.add(s_)
            for l in p_lines(s_): a.vm(l, f"pp{s_}")
    def send(s_):
        if s_ == 3: a.stamp("fend")
        c = ACC2[s_]
        fill.extend(lines(f"s_xor_b32 {sT[0]}, {sCB}, {4*s_}\ns_sub_i32 {sT[0]}, {sT[0]}, {sCB}\ns_mul_i32 {sT[0]}, {sT[0]}, 6144\n"
                          f"s_add_u32 {sT[0]}, {sT[0]}, {sPIN}\ns_add_u32 {sT[0]}, {sT[0]}, {2048*(s_-1)}"))
        for ks in range(2):
            for d in range(4):
                fill.extend(lines(f"v_cvt_pk_bf16_f32 v{c+8*ks+d}, v{c+8*ks+2*d}, v{c+8*ks+2*d+1}\nv_and_or_b32 v{c+8*ks+d}, v{c+8*ks+d}, s29, {vTG}"))
            fill.append(store(f"buffer_store_dwordx4 {vr(c+8*ks)}, {vL16}, {srd('WS')}, {sT[0]} offen offset:{1024*ks} sc1", f"pst{s_}"))
        fill.append((0, lambda: when(cur[0] + cfg.get("dp", 24), lambda: p_load(s_))))
    for s_ in (1, 2, 3): when(fin[s_] + (1 if s_ < 3 or fin[3] - fin[2] > 2 else 0), lambda s_=s_: send(s_))

    CAP, THR, GAP = cfg.get("cap", 26), cfg.get("thr", 120), cfg.get("gap", 33)
    NPRE = cfg.get("npre", 20)
    for n in range(NPRE):
        read_one()
        k = -(-len(pre_stream) // (NPRE - n))
        a("\n".join(pre_stream[:k])); pre_stream = pre_stream[k:]
    flag_check(a, *ag(0))
    for i, e in enumerate(seq):
        cur[0] = i
        for m in e.get("mark", []):
            while m not in done: pop()
        if e.get("need"): assert e["need"] in done, (i, e["need"])
        if e.get("gw"): vforce(e["gw"]); a.wait(e["gw"])
        if e.get("vw") is not None and e["vw"] >= 16:
            vforce(f"a{e['vw']}"); a.wait(f"a{e['vw']}")
        if comp[0] < i: lg_wait(min(i + 1, issued[0] - 1))
        c = vr(e["acc"], 16)
        a(f"{MF32} {c}, {ar(4 * (i % RING))}, {e['b']}, {0 if e['first'] else c}")
        a.stamp(f"m{i}")
        while i in at:
            for fn in at.pop(i): fn()
        nr = 0
        while issued[0] < NS and issued[0] <= i + PD: read_one(); nr += 1
        backlog[0] = max(0, backlog[0] - GAP)
        el = sorted(it for it in vq if it[2] <= i)
        if el and backlog[0] <= THR: vrun(el[0])
        reserve = 4 if comp[0] < i + 1 else 0
        while fill and a.slots + fill[0][0] + reserve <= CAP: pop()
        while nr < 1 + (i & 1) and may_run_ahead(i) and a.slots + 2 * len(seq[issued[0]]["rd"]) + reserve <= 24:
            read_one(); nr += 1
        if cfg.get("verbose") and i % 16 == 0: print(f"  i={i} vmem ahead{issued[0]-i}", file=sys.stderr)
    while fill: pop()
    vforce("res")
    assert not vq, vq
    a.stamp("mend")
    own = vr(ACC2[0], 16)
    if 3 not in ploaded and cfg.get("p_wait", 1): a.wait("pst3")
    for s_ in (1, 2, 3): p_load(s_)
    a.wait("res")
    for ks in range(2):
        a(f"{MF32} {own}, {vr(SEL+4*ks)}, {vr(HR+4*ks)}, {own}")
    for s_ in (1, 2, 3):
        flag_check(a, f"pp{s_}", p_lines(s_), p_chk(s_))
        if s_ == 3: a.stamp("pgot")
        for ks in range(2):
            a(f"{MF32} {own}, {vr(SEL+4*ks)}, {vr(PF+8*(s_-1)+4*ks)}, {own}")
    of = cfg.get("oflag", "").replace("_", " ")
    for ks in range(2):
        for d in range(4):
            a(f"v_cvt_pk_bf16_f32 v{64+4*ks+d}, v{224+8*ks+2*d}, v{224+8*ks+2*d+1}")
        if cfg.get("otr", 1): a(f"ds_write_b128 v{16+ks}, {vr(64+4*ks)}")
        else: a.vm(f"buffer_store_dwordx4 {vr(64+4*ks)}, v5, {srd('OUT')}, {sOC} offen offset:{32*ks}{of}", "ost")
    if cfg.get("otr", 1):
        a(f"s_waitcnt lgkmcnt(0)\nds_read_b128 {vr(72)}, v200\nds_read_b128 {vr(76)}, v200 offset:1024\ns_waitcnt lgkmcnt(1)")
        a.vm(f"buffer_store_dwordx4 {vr(72)}, v5, {srd('OUT')}, {sOC} offen{of}", "ost")
        a("s_waitcnt lgkmcnt(0)")
        a.vm(f"buffer_store_dwordx4 {vr(76)}, v5, {srd('OUT')}, s28 offen{of}", "ost")

def stamp_out(a):
    a("s_waitcnt vmcnt(0)")
    a.stamp("end")
    a("s_waitcnt lgkmcnt(0)")
    for i in range(16):
        a(f"v_mov_b32 v{4+i}, {f's{68+2*i}' if i < a.nst else 's100' if i == 15 else 0}")
    a(f"""
    s_lshl2_add_u32 {sT[0]}, s2, {sWID}
    s_lshl_b32 {sT[0]}, {sT[0]}, 6
    s_add_u32 {sT[0]}, {sT[0]}, {STAMP_OFF}
    v_mov_b32 v3, 0
    s_mov_b64 exec, 1
    """)
    for q in range(4):
        a(f"buffer_store_dwordx4 {vr(4+4*q)}, v3, {srd('WS')}, {sT[0]} offen offset:{16*q}")

def build(cfg):
    a = K(cfg)
    prologue(a); phase_a(a); window1(a); phase_b(a); ffn(a)
    if cfg.get("every"): a.nst = 14
    if cfg.get("stamps"): stamp_out(a)
    a("L_end:\ns_endpgm")
    a(a.tail0)
    for t in a.tail: a(t)
    a("L_last:\ns_endpgm")
    if cfg.get("every"):
        n0, st = cfg.get("from", 10), cfg["every"]
        for k in range(13, 0, -1):
            a.lines.insert(n0 + st * k, f"    {'s_memtime' if cfg.get('cyc') else 's_memrealtime'} s[{68+2*k}:{69+2*k}]")
        cfg["names"] = ["start"] + [f"L{n0+st*k}" for k in range(1, 14)] + ["end"]
    lines, added = hazard.fix(a.lines)
    print(f"{len(lines)} lines, {added} wait states added; stamps: {cfg.get('names')}", file=sys.stderr)
    head = open(f"cdna_kernels/{NAME}.s.ref").read().split("; Override launch")[0]
    kn = NAME + "_kernel"
    if cfg.get("aslist"):
        head += f"; @launch kernel={kn} grid=(256,1,1) block=(256,1,1) lds=163840\n"
    else:
        head += "; @launch grid=(256,1,1) block=(256,1,1) lds=163840\n"
    return head + HEAD + kernel_open(kn) + "\n".join(lines) + '\n.section .rodata,"a"\n' + descriptor(kn, 512, 102, 256)

if __name__ == "__main__":
    cfg = {}
    for kv in sys.argv[2:]:
        k, v = kv.split("=")
        cfg[k] = int(v) if v.lstrip("-").isdigit() and (v == "0" or v[0] != "0") else v
    open(sys.argv[1], "w").write(build(cfg))
```
